```python
import torch

def _softmax(x, axis=-1):
    return torch.softmax(x, dim=axis)
def _gelu(x):
    return torch.nn.functional.gelu(x, approximate="tanh")
def _silu(x):
    return torch.nn.functional.silu(x)
def _sigmoid(x):
    return torch.sigmoid(x)
def _layernorm(x, axis=-1, eps=1e-5):
    m = x.mean(dim=axis, keepdim=True)
    v = x.var(dim=axis, keepdim=True, unbiased=False)
    return (x - m) / torch.sqrt(v + eps)
def _scatter_add(tgt, idx, src, axis=0):
    return tgt.clone().index_add_(axis, idx, src)
def _segment_sum(src, seg, n):
    out = torch.zeros((n,) + src.shape[1:], dtype=src.dtype)
    return out.index_add_(0, seg, src)
def _pad(x, pw):
    flat = tuple(v for pair in reversed(pw) for v in pair)
    return torch.nn.functional.pad(x, flat)

kernel_name = 'interleave_layers__grouped_kv_mqa__dense_activation_silu__prompt'

def setup_inputs():

    _w = (lambda a: (lambda t: t.to(torch.bfloat16) if t.is_floating_point() else t)(torch.as_tensor(a)))
    def _A_setup():
        B, S, D, H = 1, 2048, 1024, 32
        Dh = D // H
        return {
            "x": _w((lambda *s: torch.randn(*s, dtype=torch.bfloat16) * 0.05)(B, S, D)),
            "wq": _w((lambda *s: torch.randn(*s, dtype=torch.bfloat16) * 0.05)(D, H * Dh)),
            "wk": _w((lambda *s: torch.randn(*s, dtype=torch.bfloat16) * 0.05)(D, Dh)),
            "wv": _w((lambda *s: torch.randn(*s, dtype=torch.bfloat16) * 0.05)(D, Dh)),
            "wo": _w((lambda *s: torch.randn(*s, dtype=torch.bfloat16) * 0.05)(H * Dh, D)),
        }
    _A_in = _A_setup()

    def _B_setup():
        B, S, D, F = 1, 2048, 1024, 3584
        return {
            "x": _w((lambda *s: torch.randn(*s, dtype=torch.bfloat16) * 0.05)(B, S, D)),
            "w1": _w((lambda *s: torch.randn(*s, dtype=torch.bfloat16) * 1.6)(D, F) * (D ** -0.5)),
            "w2": _w((lambda *s: torch.randn(*s, dtype=torch.bfloat16) * 1.6)(F, D) * (F ** -0.5)),
        }
    _B_in = _B_setup()

    return {
        "A_x": _A_in["x"],
        "A_wq": _A_in["wq"],
        "A_wk": _A_in["wk"],
        "A_wv": _A_in["wv"],
        "A_wo": _A_in["wo"],
        "B_x": _B_in["x"],
        "B_w1": _B_in["w1"],
        "B_w2": _B_in["w2"],
    }

def reference(A_x, A_wq, A_wk, A_wv, A_wo, B_x, B_w1, B_w2):
    def _A_ref(x, wq, wk, wv, wo):
        B, S, D = x.shape
        H = 32
        Dh = D // H
        q = (lambda x, *d: x.permute(*d))((x @ wq).reshape(B, S, H, Dh), 0, 2, 1, 3)
        k = x @ wk
        v = x @ wv
        scores = torch.einsum("bhqd,bkd->bhqk", q, k) * (Dh ** -0.5)
        p = _softmax(scores, axis=-1)
        o = torch.einsum("bhqk,bkd->bhqd", p, v)
        return (lambda x, *d: x.permute(*d))(o, 0, 2, 1, 3).reshape(B, S, H * Dh) @ wo

    def _B_ref(x, w1, w2):
        h = torch.einsum("bsd,df->bsf", x, w1)
        h = _silu(h)
        out = torch.einsum("bsf,fd->bsd", h, w2)
        return out

    x = A_x
    x = x + _A_ref(_layernorm(x, axis=-1), A_wq, A_wk, A_wv, A_wo)
    x = x + _B_ref(_layernorm(x, axis=-1), B_w1, B_w2)
    x = x + _A_ref(_layernorm(x, axis=-1), A_wq, A_wk, A_wv, A_wo)
    x = x + _B_ref(_layernorm(x, axis=-1), B_w1, B_w2)
    return x
```

```python
import re

class K:
    def __init__(self, name):
        self.name = name
        self.lines = []
        self.uid = 0
    def __call__(self, s):
        for l in s.strip("\n").split("\n"):
            l = l.strip()
            if l:
                self.lines.append(l)
    def label(self, base):
        self.uid += 1
        return f"L_{self.name}_{base}_{self.uid}"
    def nop(self, n):
        while n > 0:
            k = min(n, 16)
            self(f"s_nop {k-1}")
            n -= k
    def text(self):
        out = []
        for l in self.lines:
            out.append(l if l.endswith(":") else "    " + l)
        return "\n".join(out)

def vr(b, n=1, p="v"):
    return f"{p}{b}" if n == 1 else f"{p}[{b}:{b+n-1}]"
def ar(b, n=1): return vr(b, n, "a")
def sr(b, n=1): return vr(b, n, "s")

_reg = re.compile(r"^(-|\|)?(abs\()?([vas])(\d+|\[(\d+):(\d+)\])\)?\|?$")
def regs_of(op):
    op = op.strip()
    if op in ("vcc",): return [("s", 106), ("s", 107)]
    if op == "vcc_lo": return [("s", 106)]
    if op == "vcc_hi": return [("s", 107)]
    if op == "exec": return [("s", 126), ("s", 127)]
    if op == "m0": return [("s", 124)]
    m = _reg.match(op)
    if not m: return []
    p = m.group(3)
    if m.group(5) is not None:
        return [(p, i) for i in range(int(m.group(5)), int(m.group(6)) + 1)]
    return [(p, int(m.group(4)))]

TRANS = ("v_exp_f32", "v_log_f32", "v_rcp_f32", "v_rsq_f32", "v_sqrt_f32", "v_sin_f32", "v_cos_f32", "v_exp_f16", "v_rcp_iflag_f32")

def parse(line):
    line = line.split(";")[0].strip()
    if not line or line.endswith(":") or line.startswith("."): return None
    parts = line.split(None, 1)
    mn = parts[0]
    rest = parts[1] if len(parts) > 1 else ""
    ops, cur, depth = [], "", 0
    for ch in rest:
        if ch in "[(": depth += 1
        if ch in "])": depth -= 1
        if ch == "," and depth == 0:
            ops.append(cur.strip()); cur = ""
        else: cur += ch
    if cur.strip(): ops.append(cur.strip())
    mods = ""
    if ops:
        sp = ops[-1].split(None, 1)
        ops[-1] = sp[0]
        if len(sp) > 1: mods = sp[1]
    d = dict(mn=mn, ops=ops, mods=mods, w=[], r=[], cls="other", line=line, srcC=[], AB=[], passes=0, data=[])
    R = lambda *idx: [x for i in idx if i < len(ops) for x in regs_of(ops[i])]
    if mn.startswith("v_mfma"):
        d["cls"] = "mfma"
        d["w"] = R(0); d["AB"] = R(1, 2); d["srcC"] = R(3); d["r"] = d["AB"] + d["srcC"]
        d["passes"] = 8 if "32x32x16" in mn else 4 if "16x16x32" in mn else None
        assert d["passes"], line
    elif mn.startswith("v_cmp"):
        d["cls"] = "valu"; d["w"] = R(0); d["r"] = R(1, 2)
        if mn.startswith("v_cmpx"): d["w"] += regs_of("exec")
    elif mn.startswith("v_readfirstlane") or mn.startswith("v_readlane"):
        d["cls"] = "valu"; d["w"] = R(0); d["r"] = R(1, 2); d["rl"] = True
    elif mn.startswith("v_permlane"):
        d["cls"] = "valu"; d["w"] = R(0, 1); d["r"] = R(0, 1); d["perm"] = True
    elif mn.startswith("v_add_co") or mn.startswith("v_sub_co") or mn.startswith("v_addc_co"):
        d["cls"] = "valu"; d["w"] = R(0, 1); d["r"] = R(2, 3, 4)
    elif mn.startswith("v_"):
        d["cls"] = "valu"; d["w"] = R(0); d["r"] = R(*range(1, len(ops)))
        if mn.startswith(("v_fmac", "v_dot2c", "v_pk_fmac")) or "UNUSED_PRESERVE" in mods: d["r"] += R(0)
        if mn.startswith("v_cndmask") and len(ops) == 3: d["r"] += regs_of("vcc")
        if mn.split("_e")[0] in TRANS or mn in TRANS: d["trans"] = True
        if "dpp" in mn or "row_" in mods or "quad_perm" in mods: d["dpp"] = True
        if mn.startswith("v_dot2"): d["dot"] = True
    elif mn.startswith("buffer_load") or mn.startswith("global_load"):
        d["cls"] = "vmem"
        if " lds" in " " + mods or "_lds_" in mn:
            d["r"] = R(*range(len(ops))) + regs_of("m0"); d["dma"] = True
        else:
            d["w"] = R(0); d["r"] = R(*range(1, len(ops)))
    elif mn.startswith("buffer_store") or mn.startswith("buffer_atomic"):
        d["cls"] = "vmem"; d["r"] = R(*range(len(ops))); d["data"] = R(0)
        if mn.startswith("buffer_atomic") and "sc0" in mods: d["w"] = R(0)
        d["wide"] = mn.endswith("x3") or mn.endswith("x4")
    elif mn.startswith("global_store") or mn.startswith("global_atomic"):
        d["cls"] = "vmem"; d["r"] = R(*range(len(ops))); d["data"] = R(1)
        d["wide"] = mn.endswith("x3") or mn.endswith("x4")
    elif mn.startswith("ds_read") or mn.startswith("ds_bpermute") or mn.startswith("ds_swizzle"):
        d["cls"] = "ds"; d["w"] = R(0); d["r"] = R(*range(1, len(ops)))
    elif mn.startswith("ds_"):
        d["cls"] = "ds"; d["r"] = R(*range(len(ops)))
    elif mn == "s_nop":
        d["cls"] = "nop"; d["n"] = int(ops[0], 0) + 1
    elif mn.startswith("s_"):
        d["cls"] = "salu"
        if mn.startswith(("s_cmp", "s_cbranch", "s_branch", "s_waitcnt", "s_barrier", "s_endpgm", "s_setprio", "s_sleep", "s_bitcmp")):
            d["r"] = R(*range(len(ops)))
        else:
            d["w"] = R(0); d["r"] = R(*range(1, len(ops)))
            if "saveexec" in mn: d["w"] += regs_of("exec")
    return d

def need(p, c):
    n = 0
    pw, cr, cw = set(p["w"]), set(c["r"]), set(c["w"])
    pc, cc = p["cls"], c["cls"]
    isv = lambda s: {x for x in s if x[0] in "va"}
    iss = lambda s: {x for x in s if x[0] == "s"}
    if pc == "valu":
        if cc == "mfma" and isv(pw) & cr: n = max(n, 2)
        if cc == "mfma" and set(regs_of("exec")) & pw: n = max(n, 4)
        if cc == "valu":
            if p.get("trans") and not c.get("trans") and isv(pw) & cr: n = max(n, 1)
            if p.get("trans") and c.get("trans") and isv(pw) & cr: n = max(n, 1)
            if c.get("perm") and isv(pw) & cr: n = max(n, 2)
            if c.get("rl") and isv(pw) & cr: n = max(n, 1)
            if c.get("dpp") and isv(pw) & cr: n = max(n, 2)
            if iss(pw) & cr: n = max(n, 4 if c.get("rl") else 2)
            if ("sdwa" in p["mn"] or "op_sel" in p["mods"]) and not p["mn"].startswith("v_pk") and isv(pw) & (cr | cw): n = max(n, 1)
            if p.get("dot") and isv(pw) & (cr | cw):
                same = c["mn"] == p["mn"]
                if not (same and not (isv(pw) & set(regs_of(c["ops"][1]) + regs_of(c["ops"][2])))): n = max(n, 3)
            if set(regs_of("exec")) & pw and (c.get("rl") or c.get("perm")): n = max(n, 4)
            if set(regs_of("exec")) & pw and c.get("dpp"): n = max(n, 5)
        if p.get("dot") and cc in ("vmem", "ds", "mfma") and isv(pw) & cr: n = max(n, 3)
        if cc == "vmem" and iss(pw) & cr: n = max(n, 5)
    if pc == "mfma":
        P = p["passes"]
        if cc == "mfma":
            if pw & set(c["AB"]): n = max(n, {4: 8, 8: 12}[P])
            ov = pw & set(c["srcC"])
            if ov:
                if not (set(c["srcC"]) == pw and c["passes"] == P): n = max(n, {4: 6, 8: 10}[P])
            elif pw & cw: n = max(n, {4: 8, 8: 12}[P])
        elif cc in ("valu", "vmem", "ds"):
            if pw & (cr | cw): n = max(n, {4: 8, 8: 12}[P])
            if cc == "valu" and set(p["srcC"]) & cw: n = max(n, {4: 3, 8: 7}[P])
    if pc == "salu" and ("s", 124) in pw and c.get("dma"): n = max(n, 1)
    if pc == "vmem" and p.get("wide") and set(p["data"]) & cw: n = max(n, 2 if cc == "valu" else 1)
    return n

def check_hazards(lines, name=""):
    ins = []
    labels = {}
    for l in lines:
        if l.endswith(":"):
            labels[l[:-1]] = len(ins); continue
        d = parse(l)
        if d: ins.append(d)
    errs = []
    def scan(seq):
        for i, c in enumerate(seq):
            dist = 0
            for j in range(i - 1, max(-1, i - 24), -1):
                p = seq[j]
                nd = need(p, c)
                if nd > dist:
                    errs.append(f"{name}: need {nd} have {dist}: [{p['line']}] -> [{c['line']}]")
                dist += p.get("n", 1)
                if dist >= 20: break
    scan(ins)
    for i, d in enumerate(ins):
        if d["mn"].startswith(("s_cbranch", "s_branch")):
            t = labels.get(d["ops"][0])
            if t is None: continue
            seq = ins[max(0, i - 24):i + 1] + ins[t:t + 24]
            scan(seq)
    return sorted(set(errs))

def kernel_desc(name, vgpr, accum, sgpr=96):
    return f""".p2align 6
.amdhsa_kernel {name}
  .amdhsa_next_free_vgpr {vgpr}
  .amdhsa_next_free_sgpr {sgpr}
  .amdhsa_accum_offset {accum}
  .amdhsa_group_segment_fixed_size 0
  .amdhsa_kernarg_size 88
  .amdhsa_user_sgpr_count 2
  .amdhsa_user_sgpr_kernarg_segment_ptr 1
  .amdhsa_system_sgpr_workgroup_id_x 1
.end_amdhsa_kernel
"""
```

```python
import sys, os
sys.path.insert(0, os.path.dirname(os.path.abspath(__file__)))
from asmlib import *

KB = 1024
XF, QF, OF = 0x0000000, 0x0400000, 0x0800000
KV, STA, STB = 0x0C00000, 0x0C40000, 0x0C80000
CQ, C1 = 0x0CC0000, 0x0CD0000
WQ, WKV, WO, W1, W2, HF = 0x0D00000, 0x0F00000, 0x1000000, 0x1200000, 0x1900000, 0x2000000
WS_SIZE = 0x10000000
A_X, A_WQ, A_WK, A_WV, A_WO, A_BX, A_W1, A_W2, A_OUT, A_DBG, A_WS = [8 * i for i in range(11)]

LOG2E = 1.4426950408889634
import struct
def f32(x): return "0x%08x" % struct.unpack("<I", struct.pack("<f", x))[0]

def srd(k, d, lo, hi, size):
    if lo != f"s{d}": k(f"s_mov_b32 s{d}, {lo}")
    if hi != f"s{d+1}": k(f"s_mov_b32 s{d+1}, {hi}")
    k(f"s_mov_b32 s{d+2}, {size}")
    k(f"s_mov_b32 s{d+3}, 0x20000")

def srd_off(k, d, base, off, size):
    k(f"s_add_u32 s{d}, s{base}, {off}")
    k(f"s_addc_u32 s{d+1}, s{base+1}, 0")
    k(f"s_mov_b32 s{d+2}, {size}")
    k(f"s_mov_b32 s{d+3}, 0x20000")

def tile_ids(k, smt, snt, t0, t1):
    k(f"""
    s_and_b32 s{t0}, s2, 7
    s_lshr_b32 s{t1}, s2, 3
    s_lshr_b32 s{smt}, s{t0}, 1
    s_lshl_b32 s{smt}, s{smt}, 2
    s_lshr_b32 s{snt}, s{t1}, 3
    s_add_u32 s{smt}, s{smt}, s{snt}
    s_and_b32 s{snt}, s{t0}, 1
    s_lshl_b32 s{snt}, s{snt}, 3
    s_and_b32 s{t1}, s{t1}, 7
    s_add_u32 s{snt}, s{snt}, s{t1}
    """)

def split3_pack(k, src, t1, t2, out, ssel, side):
    k(f"""
    v_and_b32 v{t1}, 0xffff0000, v{src}
    v_sub_f32 v{t1}, v{src}, v{t1}
    v_and_b32 v{t2}, 0xffff0000, v{t1}
    v_sub_f32 v{t2}, v{t1}, v{t2}
    """)
    p1, p2, p3 = src, t1, t2
    pk = lambda d, lo, hi: k(f"v_perm_b32 v{d}, v{hi}, v{lo}, s{ssel}")
    if side == "A":
        pk(out, p1, p2); pk(out + 1, p1, p2); pk(out + 2, p3, p1)
    else:
        pk(out, p1, p1); pk(out + 1, p2, p2); pk(out + 2, p1, p3)
    k(f"v_mov_b32 v{out+3}, 0")

def halves_sum(k, a, tmp):
    k(f"v_mov_b32 v{tmp}, v{a}")
    k.nop(2)
    k(f"v_permlane32_swap_b32 v{a}, v{tmp}")
    k.nop(1)
    k(f"v_add_f32 v{a}, v{a}, v{tmp}")

NX, NQ, N1, NO, N2 = 128, 34, 112, 32, 112
def gen_prep():
    k = K("prep_kernel")
    tot = NX + NQ + N1 + NO + N2
    end = k.label("end")
    k(f"""
    s_cmp_ge_u32 s2, {tot}
    s_cbranch_scc1 {end}
    s_load_dwordx2 s[4:5], s[0:1], {A_WS}
    s_load_dwordx4 s[36:39], s[0:1], {A_X}
    s_load_dwordx4 s[40:43], s[0:1], {A_WK}
    s_load_dwordx2 s[44:45], s[0:1], {A_WO}
    s_load_dwordx4 s[48:51], s[0:1], {A_W1}
    v_lshrrev_b32 v1, 6, v0
    v_and_b32 v2, 63, v0
    v_readfirstlane_b32 s26, v1
    v_lshlrev_b32 v3, 4, v2
    s_mov_b32 s34, 0x07060302
    s_waitcnt lgkmcnt(0)
    """)
    srd(k, 16, "s4", "s5", WS_SIZE)
    lw = k.label("w")
    k(f"s_cmp_ge_u32 s2, {NX}")
    k(f"s_cbranch_scc1 {lw}")
    srd(k, 8, "s36", "s37", 2048 * 2048)
    k(f"""
    s_lshl_b32 s24, s2, 3
    s_add_u32 s24, s24, s26
    s_lshr_b32 s27, s24, 4
    s_and_b32 s25, s24, 15
    v_and_b32 v4, 31, v2
    v_lshrrev_b32 v5, 5, v2
    v_lshlrev_b32 v6, 11, v4
    v_lshl_add_u32 v6, v5, 4, v6
    s_lshl_b32 s28, s27, 16
    s_lshl_b32 s29, s25, 7
    s_add_u32 s28, s28, s29
    """)
    for q in range(4):
        k(f"buffer_load_dwordx4 v[{8+4*q}:{11+4*q}], v6, s[8:11], s28 offen offset:{32*q}")
    k(f"""
    v_mov_b32 v24, 0
    v_mov_b32 v25, 0
    v_mov_b32 v26, 0x3f803f80
    s_lshl_b32 s28, s27, 16
    s_lshl_b32 s29, s25, 12
    s_add_u32 s28, s28, s29
    s_add_u32 s28, s28, {XF}
    s_lshl_b32 s30, s25, 14
    s_lshl_b32 s31, s27, 8
    s_add_u32 s30, s30, s31
    s_add_u32 s30, s30, {STA}
    v_lshlrev_b32 v7, 3, v4
    s_waitcnt vmcnt(0)
    """)
    for i in range(16):
        k(f"v_dot2_f32_bf16 v24, v{8+i}, v26, v24")
        k(f"v_dot2_f32_bf16 v25, v{8+i}, v{8+i}, v25")
    for q in range(4):
        b = 8 + 4 * q
        k(f"v_permlane32_swap_b32 v{b}, v{b+2}")
        k(f"v_permlane32_swap_b32 v{b+1}, v{b+3}")
    for q in range(4):
        k(f"buffer_store_dwordx4 v[{8+4*q}:{11+4*q}], v3, s[16:19], s28 offen offset:{1024*q}")
    k("v_mov_b32 v27, v24")
    k("v_mov_b32 v28, v25")
    k.nop(2)
    k("v_permlane32_swap_b32 v24, v27")
    k("v_permlane32_swap_b32 v25, v28")
    k.nop(1)
    k("v_add_f32 v24, v24, v27")
    k("v_add_f32 v25, v25, v28")
    k("buffer_store_dwordx2 v[24:25], v7, s[16:19], s30 offen")
    k("s_endpgm")
    k(f"{lw}:")
    join = k.label("join")
    l1, lo_, l2, lkv = k.label("w1"), k.label("wo"), k.label("w2"), k.label("kv")
    k(f"""
    s_lshl_b32 s30, s26, 3
    s_cmp_ge_u32 s2, {NX+NQ+N1+NO}
    s_cbranch_scc1 {l2}
    s_cmp_ge_u32 s2, {NX+NQ+N1}
    s_cbranch_scc1 {lo_}
    s_cmp_ge_u32 s2, {NX+NQ}
    s_cbranch_scc1 {l1}
    s_cmp_ge_u32 s2, {NX+32}
    s_cbranch_scc1 {lkv}
    """)
    srd(k, 8, "s38", "s39", 1024 * 2048)
    k(f"""
    s_mov_b32 s28, 2048
    s_sub_u32 s29, s2, {NX}
    s_lshr_b32 s31, s29, 1
    s_lshl_b32 s31, s31, 7
    s_and_b32 s35, s29, 1
    s_add_u32 s31, s31, s35
    s_lshl_b32 s31, s31, 10
    s_add_u32 s31, s31, {WQ}
    s_mov_b32 s32, 2048
    s_lshl_b32 s33, s29, 10
    s_add_u32 s33, s33, {CQ}
    s_branch {join}
    {lkv}:
    s_cmp_eq_u32 s2, {NX+32}
    s_cselect_b32 s8, s40, s42
    s_cselect_b32 s9, s41, s43
    s_cselect_b32 s31, {WKV}, {WKV + 64*KB}
    s_cselect_b32 s33, {CQ + 32*KB}, {CQ + 33*KB}
    s_mov_b32 s10, {1024*64}
    s_mov_b32 s11, 0x20000
    s_mov_b32 s28, 64
    s_mov_b32 s29, 0
    s_mov_b32 s32, 1024
    s_branch {join}
    {l1}:
    """.replace(f"s_cselect_b32 s31, {WKV}, {WKV + 64*KB}", f"s_cselect_b32 s31, 0, 64\n s_lshl_b32 s31, s31, 10\n s_add_u32 s31, s31, {WKV}\n s_cmp_eq_u32 s2, {NX+32}")
       .replace(f"s_cselect_b32 s33, {CQ + 32*KB}, {CQ + 33*KB}", f"s_cselect_b32 s33, 32, 33\n s_lshl_b32 s33, s33, 10\n s_add_u32 s33, s33, {CQ}"))
    srd(k, 8, "s48", "s49", 1024 * 7168)
    k(f"""
    s_mov_b32 s28, 7168
    s_sub_u32 s29, s2, {NX+NQ}
    s_mul_i32 s31, s29, 9363
    s_lshr_b32 s31, s31, 16
    s_mul_i32 s35, s31, 7
    s_sub_u32 s35, s29, s35
    s_mul_i32 s31, s31, {64*7}
    s_add_u32 s31, s31, s35
    s_lshl_b32 s31, s31, 10
    s_add_u32 s31, s31, {W1}
    s_mov_b32 s32, 7168
    s_lshl_b32 s33, s29, 10
    s_add_u32 s33, s33, {C1}
    s_branch {join}
    {lo_}:
    """)
    srd(k, 8, "s44", "s45", 1024 * 2048)
    k(f"""
    s_mov_b32 s28, 2048
    s_sub_u32 s29, s2, {NX+NQ+N1}
    s_lshr_b32 s31, s29, 1
    s_lshl_b32 s31, s31, 7
    s_and_b32 s35, s29, 1
    s_add_u32 s31, s31, s35
    s_lshl_b32 s31, s31, 10
    s_add_u32 s31, s31, {WO}
    s_mov_b32 s32, 2048
    s_mov_b32 s33, 0
    s_branch {join}
    {l2}:
    """)
    srd(k, 8, "s50", "s51", 3584 * 2048)
    k(f"""
    s_mov_b32 s28, 2048
    s_sub_u32 s35, s2, {NX+NQ+N1+NO}
    s_lshl_b32 s35, s35, 3
    s_add_u32 s35, s35, s26
    s_mul_i32 s29, s35, 2341
    s_lshr_b32 s29, s29, 16
    s_mul_i32 s30, s29, 28
    s_sub_u32 s30, s35, s30
    s_lshl_b32 s30, s30, 3
    s_lshr_b32 s31, s29, 1
    s_mul_i32 s31, s31, {224*2}
    s_and_b32 s35, s29, 1
    s_add_u32 s31, s31, s35
    s_lshl_b32 s31, s31, 10
    s_add_u32 s31, s31, {W2}
    s_mov_b32 s32, 2048
    s_mov_b32 s33, 0
    {join}:
    v_lshrrev_b32 v4, 2, v2
    v_mul_lo_u32 v4, v4, s28
    v_and_b32 v5, 3, v2
    v_lshl_add_u32 v4, v5, 4, v4
    s_lshl_b32 s28, s28, 4
    s_mul_i32 s24, s30, s28
    s_lshl_b32 s25, s29, 6
    s_add_u32 s24, s24, s25
    s_lshl_b32 s27, s26, 13
    """)
    for i in range(8):
        k(f"s_add_u32 m0, s27, {1024*i}")
        k("s_nop 0")
        k(f"buffer_load_dwordx4 v4, s[8:11], s24 offen lds")
        k(f"s_add_u32 s24, s24, s28")
    k(f"""
    v_lshrrev_b32 v5, 5, v2
    v_bfe_u32 v6, v2, 2, 2
    v_lshl_add_u32 v5, v5, 2, v6
    v_lshlrev_b32 v5, 6, v5
    v_bfe_u32 v6, v2, 4, 1
    v_lshl_add_u32 v5, v6, 5, v5
    v_and_b32 v6, 3, v2
    v_lshl_add_u32 v5, v6, 3, v5
    v_add_u32 v5, s27, v5
    s_mul_i32 s24, s30, s32
    s_add_u32 s24, s24, s31
    v_mov_b32 v60, 0x3f803f80
    v_mov_b32 v61, 0x3f803f80
    v_mov_b32 v62, 0x3f803f80
    v_mov_b32 v63, 0x3f803f80
    s_waitcnt vmcnt(0)
    """)
    for i in range(8):
        k(f"ds_read_b64_tr_b16 v[{8+4*i}:{9+4*i}], v5 offset:{1024*i}")
        k(f"ds_read_b64_tr_b16 v[{10+4*i}:{11+4*i}], v5 offset:{1024*i+512}")
        if i == 3: k("s_waitcnt lgkmcnt(0)")
    k("s_waitcnt lgkmcnt(0)")
    for i in range(8):
        k(f"buffer_store_dwordx4 v[{8+4*i}:{11+4*i}], v3, s[16:19], s24 offen")
        k(f"s_add_u32 s24, s24, s32")
    k(f"s_cmp_eq_u32 s33, 0")
    k(f"s_cbranch_scc1 {end}")
    for i in range(8):
        k(f"v_mfma_f32_32x32x16_bf16 v[40:55], v[60:63], v[{8+4*i}:{11+4*i}], {'0' if i == 0 else 'v[40:55]'}")
    k(f"""
    v_and_b32 v5, 31, v2
    v_lshlrev_b32 v5, 2, v5
    v_add_u32 v5, 0x10000, v5
    s_lshl_b32 s24, s26, 7
    v_add_u32 v6, s24, v5
    """)
    k.nop(12)
    k(f"""
    ds_write_b32 v6, v40
    s_waitcnt lgkmcnt(0)
    s_barrier
    s_cmp_lg_u32 s26, 0
    s_cbranch_scc1 {end}
    """)
    for i in range(8):
        k(f"ds_read_b32 v{8+i}, v5 offset:{128*i}")
    k("s_waitcnt lgkmcnt(0)")
    for i in range(1, 8):
        k(f"v_add_f32 v8, v8, v{8+i}")
    k("v_cmp_gt_u32 vcc, 32, v2")
    k.nop(2)
    k("v_cndmask_b32 v8, 0, v8, vcc")
    split3_pack(k, 8, 9, 10, 12, 34, "A")
    k("buffer_store_dwordx4 v[12:15], v3, s[16:19], s33 offen")
    k(f"{end}:")
    k("s_endpgm")
    return k, dict(grid=tot, block=512, lds=65536 + 1024, vgpr=64, accum=64)

class VM:
    pass

def gemm_mainloop(k, NB, KS, R, NST, AB, L, regs, extra=None, first=True):
    Q = KS * NB
    SLOT = Q * KB
    P = Q // 4
    RB = L + 1
    BODY = R * Q
    assert BODY % RB == 0 and (R * KS) % AB == 0 and NST % R == 0
    acc, wf, act = regs["acc"], regs["wf"], regs["act"]
    items = []
    def act_load(lst, t):
        lst.append(("vm", ("A", t), f"buffer_load_dwordx4 {ar(act + 4*(t % AB), 4)}, v{regs['vL0']}, s[8:11], s28 offen offset:{(t%4)*1024}"))
        if extra:
            lst.append(("vm", ("E", t), f"buffer_load_dwordx4 {ar(regs['ex'] + 4*(t % AB), 4)}, v{regs['vL0']}, s[20:23], s28 offen offset:{(t%4)*1024}"))
        if t % 4 == 3: lst.append(("txt", "s_add_u32 s28, s28, 4096"))
    def dma_ops(s):
        out = []
        slot = s % R
        for p in range(P):
            o = []
            g = p // 4
            if p % 4 == 0:
                o.append(("txt", f"s_add_u32 m0, s30, {slot*SLOT + 4096*g}"))
                if g > 0: o.append(("txt", f"s_add_u32 s60, s29, {4096*g}"))
                else: o.append(("txt", "s_nop 0"))
            so = "s29" if g == 0 else "s60"
            o.append(("vm", ("W", s, p), f"buffer_load_dwordx4 v{regs['vL0']}, s[12:15], {so} offen offset:{(p%4)*1024} lds"))
            if p == P - 1: o.append(("txt", f"s_add_u32 s29, s29, {SLOT}"))
            out.append(o)
        return out
    def dsread(q):
        qq = q % BODY
        off = qq * KB
        base = regs["vL0"] if off < 65536 else regs["vL1"]
        return f"ds_read_b128 {vr(wf + 4*(q % RB), 4)}, v{base} offset:{off % 65536}"
    pro = []
    ta = 0
    for s in range(R - 1):
        for o in dma_ops(s): pro += o
        for _ in range(KS):
            if ta < AB: act_load(pro, ta); ta += 1
    while ta < AB: act_load(pro, ta); ta += 1
    pro2 = [("wait", ("W", 0, P - 1)), ("txt", "s_barrier")]
    for q in range(L): pro2.append(("txt", dsread(q)))
    body = []
    pend = []
    sched = {}
    for s in range(R):
        q0 = s * Q + Q - L
        ops = dma_ops(s + R - 1)
        for p, o in enumerate(ops):
            qq = q0 + (p * Q) // P // 1
            rel = 0
            if qq >= BODY:
                qq -= BODY; rel = -R
            o2 = [(x[0], (x[1][0], x[1][1] + rel, x[1][2]), x[2]) if x[0] == "vm" else x for x in o]
            sched.setdefault(qq, []).extend(o2)
    for q in range(BODY):
        t, nb = q // NB, q % NB
        if nb == 0:
            body.append(("wait", ("E" if extra else "A", t)))
        body.append(("txt", f"s_waitcnt lgkmcnt({L-1})"))
        a = acc + 16 * nb
        body.append(("txt", f"v_mfma_f32_32x32x16_bf16 {vr(a,16)}, {vr(wf + 4*(q % RB), 4)}, {ar(act + 4*(t % AB), 4)}, {vr(a,16)}"))
        if (q + L) % Q == 0:
            s1 = (q + L) // Q
            body.append(("wait", ("W", s1, P - 1)))
            body.append(("txt", "s_barrier"))
        body.append(("txt", dsread(q + L)))
        if nb == NB - 1:
            if extra:
                ea = regs["exacc"]
                w_, a_ = ar(regs["ex"] + 4 * (t % AB), 4), ar(act + 4 * (t % AB), 4)
                A_, B_ = (w_, a_) if extra == "K" else (a_, w_)
                body.append(("txt", f"v_mfma_f32_32x32x16_bf16 {vr(ea,16)}, {A_}, {B_}, {vr(ea,16)}"))
            act_load(body, t + AB)
        body += sched.get(q, [])
    wrapped = {x[1] for lst in sched.values() for x in lst if x[0] == "vm" and x[1][1] == R - 2}
    if wrapped:
        pro = []
        ta = 0
        for s in range(R - 1):
            for p, o in enumerate(dma_ops(s)):
                if ("W", s, p) in wrapped: continue
                pro += o
            for _ in range(KS):
                if ta < AB: act_load(pro, ta); ta += 1
        while ta < AB: act_load(pro, ta); ta += 1
    NIT = NST // R
    seq = []
    waits = {}
    def shift(tag, it):
        if tag[0] in "AE": return (tag[0], tag[1] + it * R * KS)
        return (tag[0], tag[1] + it * R, tag[2])
    issued = []
    def run(lst, it, key):
        for i, x in enumerate(lst):
            if x[0] == "vm": issued.append(shift(x[1], it))
            elif x[0] == "wait":
                tg = shift(x[1], it)
                idx = issued.index(tg)
                n = len(issued) - 1 - idx
                waits[(key, i)] = min(waits.get((key, i), 63), n)
    run(pro, 0, "p"); run(pro2, 0, "p2")
    for it in range(NIT): run(body, it, "b")
    def emit(lst, key):
        for i, x in enumerate(lst):
            if x[0] == "wait": k(f"s_waitcnt vmcnt({waits[(key, i)]})")
            else: k(x[-1])
    emit(pro, "p")
    regs["pro"](k, len([x for x in pro if x[0] == "vm"]))
    emit(pro2, "p2")
    lp = k.label("loop")
    k(f"s_mov_b32 s31, {NIT}")
    k(f"{lp}:")
    emit(body, "b")
    k("s_sub_u32 s31, s31, 1")
    k("s_cmp_lg_u32 s31, 0")
    k(f"s_cbranch_scc1 {lp}")

def stats_issue(k, ST, vst, voff, stb):
    k(f"""
    v_lshrrev_b32 v{voff}, 5, v2
    v_lshlrev_b32 v{voff}, 17, v{voff}
    v_and_b32 v{vst}, 31, v2
    v_lshl_add_u32 v{voff}, v{vst}, 3, v{voff}
    s_lshl_b32 s33, s{stb}, 8
    s_add_u32 s33, s33, {ST}
    """)
    for i in range(8):
        k(f"buffer_load_dwordx2 {vr(vst+2*i, 2)}, v{voff}, s[16:19], s33 offen")
        if i < 7: k("s_add_u32 s33, s33, 16384")

def stats_finish(k, vst, vmean, vrstd):
    for i in range(1, 8):
        k(f"v_add_f32 v{vst}, v{vst}, v{vst+2*i}")
        k(f"v_add_f32 v{vst+1}, v{vst+1}, v{vst+2*i+1}")
    k(f"v_mov_b32 v{vst+2}, v{vst}")
    k(f"v_mov_b32 v{vst+3}, v{vst+1}")
    k.nop(2)
    k(f"v_permlane32_swap_b32 v{vst}, v{vst+2}")
    k(f"v_permlane32_swap_b32 v{vst+1}, v{vst+3}")
    k.nop(1)
    k(f"""
    v_add_f32 v{vst}, v{vst}, v{vst+2}
    v_add_f32 v{vst+1}, v{vst+1}, v{vst+3}
    v_mul_f32 v{vmean}, {f32(-1.0/1024)}, v{vst}
    v_mul_f32 v{vst+1}, {f32(1.0/1024)}, v{vst+1}
    v_fma_f32 v{vst+1}, -v{vmean}, v{vmean}, v{vst+1}
    v_max_f32 v{vst+1}, 0, v{vst+1}
    v_add_f32 v{vst+1}, {f32(1e-5)}, v{vst+1}
    v_rsq_f32 v{vrstd}, v{vst+1}
    """)
    k.nop(1)

def gemm_common_head(k, end, act_base, KBA, w_base, NB, P, need_out=False):
    k(f"""
    s_cmp_ge_u32 s2, 256
    s_cbranch_scc1 {end}
    s_load_dwordx2 s[4:5], s[0:1], {A_WS}
    """)
    if need_out: k(f"s_load_dwordx2 s[6:7], s[0:1], {A_OUT}")
    k("""
    v_lshrrev_b32 v1, 6, v0
    v_and_b32 v2, 63, v0
    v_readfirstlane_b32 s26, v1
    v_lshlrev_b32 v3, 4, v2
    v_add_u32 v4, 0x10000, v3
    """)
    tile_ids(k, 24, 25, 32, 33)
    k(f"""
    s_lshl_b32 s27, s24, 2
    s_add_u32 s27, s27, s26
    s_mul_i32 s32, s27, {KBA*KB}
    s_add_u32 s32, s32, {act_base}
    s_mul_i32 s33, s25, {KBA*NB*KB}
    s_add_u32 s33, s33, {w_base}
    s_mov_b32 s28, 0
    s_mul_i32 s29, s26, {P*KB}
    s_mov_b32 s30, s29
    s_mov_b32 s34, 0x07060302
    s_waitcnt lgkmcnt(0)
    """)
    srd_off(k, 8, 4, "s32", KBA * KB)
    srd_off(k, 12, 4, "s33", KBA * NB * KB)
    srd(k, 16, "s4", "s5", WS_SIZE)

def ident_frags(k, out, t):
    k(f"v_and_b32 v{t}, 31, v2")
    k(f"v_lshrrev_b32 v{t+1}, 5, v2")
    k(f"v_lshlrev_b32 v{t+1}, 2, v{t+1}")
    k(f"v_sub_u32 v{t}, v{t}, v{t+1}")
    k(f"v_mov_b32 v{t+1}, 0x3f80")
    for half in range(2):
        for i, zb in enumerate((0, 2, 8, 10)):
            d = out + 4 * half + i
            k(f"v_subrev_u32 v{d}, {zb + 16*half}, v{t}")
            k(f"v_cmp_gt_u32 s[{36+2*(4*half+i)}:{37+2*(4*half+i)}], 2, v{d}")
            k(f"v_lshlrev_b32 v{d}, 4, v{d}")
            k(f"v_lshlrev_b32 v{d}, v{d}, v{t+1}")
    for i in range(8):
        k(f"v_cndmask_b32 v{out+i}, 0, v{out+i}, s[{36+2*i}:{37+2*i}]")

def gen_res_gemm(name, act_base, KBA, w_base, ST, final=False, KS=8, R=4, AB=16, L=7):
    k = K(name)
    end = k.label("end")
    NB = 2
    NST = KBA // KS
    gemm_common_head(k, end, act_base, KBA, w_base, NB, KS * NB // 4, need_out=final)
    acc, wf, idf, pk = 8, 40, 72, 80
    xres = 4 * AB
    def pro(k, n):
        k(f"""
        s_lshl_b32 s35, s27, 16
        s_lshl_b32 s33, s25, 12
        s_add_u32 s35, s35, s33
        s_add_u32 s35, s35, {XF}
        """)
        for q in range(4):
            k(f"buffer_load_dwordx4 {ar(xres+4*q,4)}, v3, s[16:19], s35 offen offset:{1024*q}")
        ident_frags(k, idf, 5)
        for i in range(32): k(f"v_mov_b32 v{acc+i}, 0")
    regs = dict(acc=acc, wf=wf, act=0, vL0=3, vL1=4, pro=pro)
    gemm_mainloop(k, NB, KS, R, NST, AB, L, regs)
    for nb in range(2):
        for half in range(2):
            a = acc + 16 * nb
            k(f"v_mfma_f32_32x32x16_bf16 {vr(a,16)}, {vr(idf+4*half,4)}, {ar(xres+4*(2*nb+half),4)}, {vr(a,16)}")
    if final:
        srd(k, 20, "s6", "s7", 2048 * 2048)
        k(f"""
        v_and_b32 v5, 31, v2
        v_lshrrev_b32 v6, 5, v2
        v_lshlrev_b32 v5, 11, v5
        v_lshl_add_u32 v5, v6, 4, v5
        s_lshl_b32 s35, s27, 16
        s_lshl_b32 s33, s25, 7
        s_add_u32 s35, s35, s33
        """)
        k.nop(2)
    else:
        k(f"""
        v_mov_b32 v{pk+16}, 0
        v_mov_b32 v{pk+17}, 0
        v_mov_b32 v{pk+18}, 0x3f803f80
        v_and_b32 v5, 31, v2
        v_lshlrev_b32 v5, 3, v5
        s_lshl_b32 s32, s25, 14
        s_lshl_b32 s33, s27, 8
        s_add_u32 s32, s32, s33
        s_add_u32 s32, s32, {ST}
        s_nop 0
        """)
    for i in range(16):
        if i == 8: k.nop(2)
        k(f"v_cvt_pk_bf16_f32 v{pk+i}, v{acc+2*i}, v{acc+2*i+1}")
    if final:
        k.nop(2)
        for q in range(4):
            b = pk + 4 * q
            k(f"v_permlane32_swap_b32 v{b}, v{b+2}")
            k(f"v_permlane32_swap_b32 v{b+1}, v{b+3}")
        for q in range(4):
            k(f"buffer_store_dwordx4 {vr(pk+4*q,4)}, v5, s[20:23], s35 offen offset:{32*q}")
    else:
        for q in range(4):
            k(f"buffer_store_dwordx4 {vr(pk+4*q,4)}, v3, s[16:19], s35 offen offset:{1024*q}")
        for i in range(16):
            k(f"v_dot2_f32_bf16 v{pk+16}, v{pk+i}, v{pk+18}, v{pk+16}")
            k(f"v_dot2_f32_bf16 v{pk+17}, v{pk+i}, v{pk+i}, v{pk+17}")
        k.nop(3)
        k(f"v_mov_b32 v{pk+20}, v{pk+16}")
        k(f"v_mov_b32 v{pk+21}, v{pk+17}")
        k.nop(2)
        k(f"v_permlane32_swap_b32 v{pk+16}, v{pk+20}")
        k(f"v_permlane32_swap_b32 v{pk+17}, v{pk+21}")
        k.nop(1)
        k(f"v_add_f32 v{pk+16}, v{pk+16}, v{pk+20}")
        k(f"v_add_f32 v{pk+17}, v{pk+17}, v{pk+21}")
        k(f"buffer_store_dwordx2 {vr(pk+16,2)}, v5, s[16:19], s32 offen")
    k(f"{end}:")
    k("s_endpgm")
    accum = 104
    return k, dict(grid=256, block=256, lds=R * KS * NB * KB, vgpr=accum + xres + 16, accum=accum)

def gen_ffn1(name, KS=4, R=4, AB=8, L=7):
    k = K(name)
    end = k.label("end")
    NB, KBA = 7, 64
    NST = KBA // KS
    gemm_common_head(k, end, XF, KBA, W1, NB, KS * NB // 4)
    acc, wf, vst, bc, tmp = 8, 120, 152, 168, 172
    vmean, vrs = 5, 6
    corr = 4 * AB
    stats_issue(k, STB, vst, 7, 27)
    def pro(k, n):
        k(f"s_mul_i32 s35, s25, {7*KB}")
        k(f"s_add_u32 s35, s35, {C1}")
        k(f"s_add_u32 s33, s35, 4096")
        for nb in range(7):
            k(f"buffer_load_dwordx4 {ar(corr+4*nb,4)}, v3, s[16:19], {'s35' if nb < 4 else 's33'} offen offset:{1024*(nb%4)}")
        for i in range(112): k(f"v_mov_b32 v{acc+i}, 0")
        k(f"s_waitcnt vmcnt({n+7})")
        stats_finish(k, vst, vmean, vrs)
        k(f"v_mul_f32 v{vrs}, {f32(-LOG2E)}, v{vrs}")
        k(f"v_mov_b32 v{vrs+1}, v{vrs}")
        split3_pack(k, vmean, vst, vst + 1, bc, 34, "B")
    regs = dict(acc=acc, wf=wf, act=0, vL0=3, vL1=4, pro=pro)
    gemm_mainloop(k, NB, KS, R, NST, AB, L, regs)
    for nb in range(7):
        a = acc + 16 * nb
        k(f"v_mfma_f32_32x32x16_bf16 {vr(a,16)}, {ar(corr+4*nb,4)}, {vr(bc,4)}, {vr(a,16)}")
    k(f"""
    s_mul_i32 s35, s27, {224*KB}
    s_mul_i32 s33, s25, {14*KB}
    s_add_u32 s35, s35, s33
    s_add_u32 s35, s35, {HF}
    s_mov_b32 s36, {f32(-LOG2E)}
    s_mov_b32 s37, {f32(-LOG2E)}
    """)
    e = tmp
    for nb in range(7):
        a = acc + 16 * nb
        p = tmp + 16 + 8 * (nb % 2)
        for i in range(8): k(f"v_pk_mul_f32 {vr(a+2*i,2)}, {vr(a+2*i,2)}, {vr(vrs,2)}")
        for i in range(16): k(f"v_exp_f32 v{e+i}, v{a+i}")
        for i in range(8): k(f"v_pk_fma_f32 {vr(e+2*i,2)}, {vr(e+2*i,2)}, s[36:37], s[36:37]")
        for i in range(16): k(f"v_rcp_f32 v{e+i}, v{e+i}")
        for i in range(8): k(f"v_pk_mul_f32 {vr(a+2*i,2)}, {vr(a+2*i,2)}, {vr(e+2*i,2)}")
        for i in range(8): k(f"v_cvt_pk_bf16_f32 v{p+i}, v{a+2*i}, v{a+2*i+1}")
        for half in range(2):
            k(f"buffer_store_dwordx4 {vr(p+4*half,4)}, v3, s[16:19], s35 offen offset:{((2*nb+half)%4)*1024}")
        if nb % 2 == 1: k("s_add_u32 s35, s35, 4096")
    k(f"{end}:")
    k("s_endpgm")
    accum = 204
    return k, dict(grid=256, block=256, lds=R * KS * NB * KB, vgpr=accum + corr + 28, accum=accum)

def gen_qkv(name, KS=8, R=4, AB=16, L=7):
    k = K(name)
    end = k.label("end")
    NB, KBA = 2, 64
    NST = KBA // KS
    gemm_common_head(k, end, XF, KBA, WQ, NB, KS * NB // 4)
    acc, exacc, wf, vst, bc, pk = 8, 40, 56, 88, 104, 108
    vmean, vrs = 5, 6
    ex = 4 * AB
    corr = 8 * AB
    QS = (32 ** -0.5) * LOG2E
    stats_issue(k, STA, vst, 7, 27)
    lK, lV, lN, epi = k.label("K"), k.label("V"), k.label("N"), k.label("epi")
    k(f"""
    s_lshr_b32 s36, s25, 1
    s_and_b32 s36, s36, 1
    s_lshl_b32 s33, s36, 16
    s_add_u32 s33, s33, {WKV}
    """)
    srd_off(k, 20, 4, "s33", 64 * KB)
    k(f"""
    s_lshr_b32 s37, s25, 2
    s_and_b32 s33, s25, 1
    s_cmp_eq_u32 s33, 1
    s_cbranch_scc1 {lN}
    s_cmp_lg_u32 s37, s26
    s_cbranch_scc1 {lN}
    s_cmp_eq_u32 s36, 1
    s_cbranch_scc1 {lV}
    """)
    def mk_pro(extra):
        def pro(k, n):
            k(f"s_lshl_b32 s35, s25, 11")
            k(f"s_add_u32 s35, s35, {CQ}")
            nl = 2
            for nb in range(2):
                k(f"buffer_load_dwordx4 {ar(corr+4*nb,4)}, v3, s[16:19], s35 offen offset:{1024*nb}")
            if extra:
                k(f"s_mov_b32 s35, {CQ + (32 if extra == 'K' else 33) * KB}")
                k(f"buffer_load_dwordx4 {ar(corr+8,4)}, v3, s[16:19], s35 offen")
                nl = 3
            for i in range(48 if extra else 32): k(f"v_mov_b32 v{acc+i}, 0")
            k(f"s_waitcnt vmcnt({min(63, n+nl)})")
            stats_finish(k, vst, vmean, vrs)
            split3_pack(k, vmean, vst, vst + 1, bc, 34, "B")
        return pro
    for lab, extra in ((lK, "K"), (lV, "V"), (lN, None)):
        k(f"{lab}:")
        regs = dict(acc=acc, wf=wf, act=0, vL0=3, vL1=4, pro=mk_pro(extra), ex=ex, exacc=exacc)
        gemm_mainloop(k, NB, KS, R, NST, AB, L, regs, extra=extra)
        if extra:
            A_, B_ = (ar(corr + 8, 4), vr(bc, 4)) if extra == "K" else (vr(bc, 4), ar(corr + 8, 4))
            k(f"v_mfma_f32_32x32x16_bf16 {vr(exacc,16)}, {A_}, {B_}, {vr(exacc,16)}")
            k(f"s_lshl_b32 s35, s27, 12")
            k(f"s_add_u32 s35, s35, {KV + (0 if extra == 'K' else 2048)}")
            if extra == "K":
                k.nop(10)
                for i in range(16): k(f"v_mul_f32 v{exacc+i}, v{exacc+i}, v{vrs}")
            else:
                lo = R * KS * NB * KB
                k(f"""
                v_and_b32 v{vst}, 31, v2
                v_lshlrev_b32 v{vst}, 2, v{vst}
                v_add_u32 v{vst}, {lo}, v{vst}
                ds_write_b32 v{vst}, v{vrs}
                v_lshrrev_b32 v{vst+1}, 5, v2
                v_lshlrev_b32 v{vst+1}, 4, v{vst+1}
                v_add_u32 v{vst+1}, {lo}, v{vst+1}
                s_waitcnt lgkmcnt(0)
                """)
                for g in range(4): k(f"ds_read_b128 {vr(wf+4*g,4)}, v{vst+1} offset:{32*g}")
                k("s_waitcnt lgkmcnt(0)")
                for i in range(16): k(f"v_mul_f32 v{exacc+i}, v{exacc+i}, v{wf+i}")
            for i in range(8): k(f"v_cvt_pk_bf16_f32 v{pk+16+i}, v{exacc+2*i}, v{exacc+2*i+1}")
            for half in range(2):
                k(f"buffer_store_dwordx4 {vr(pk+16+4*half,4)}, v3, s[16:19], s35 offen offset:{1024*half}")
            k(f"s_branch {epi}")
    k(f"{epi}:")
    for nb in range(2):
        a = acc + 16 * nb
        k(f"v_mfma_f32_32x32x16_bf16 {vr(a,16)}, {ar(corr+4*nb,4)}, {vr(bc,4)}, {vr(a,16)}")
    k(f"""
    v_mul_f32 v{vrs}, {f32(QS)}, v{vrs}
    v_mov_b32 v{vrs+1}, v{vrs}
    s_lshl_b32 s35, s27, 16
    s_lshl_b32 s33, s25, 12
    s_add_u32 s35, s35, s33
    s_add_u32 s35, s35, {QF}
    """)
    k.nop(6)
    for i in range(16): k(f"v_pk_mul_f32 {vr(acc+2*i,2)}, {vr(acc+2*i,2)}, {vr(vrs,2)}")
    for i in range(16): k(f"v_cvt_pk_bf16_f32 v{pk+i}, v{acc+2*i}, v{acc+2*i+1}")
    for q in range(4):
        k(f"buffer_store_dwordx4 {vr(pk+4*q,4)}, v3, s[16:19], s35 offen offset:{1024*q}")
    k(f"{end}:")
    k("s_endpgm")
    accum = 132
    return k, dict(grid=256, block=256, lds=R * KS * NB * KB + 256, vgpr=accum + corr + 12, accum=accum)

def gen_attn(name):
    k = K(name)
    end = k.label("end")
    Qr, CI, S0, S1, Pr, Or, Lr, ON = 8, 16, 32, 48, 64, 72, 88, 92
    KBUF, VBUF = 96, 112
    vcur, vnxt = 4, 5
    S = [S0, S1]
    CH = 32 * KB
    k(f"""
    s_cmp_ge_u32 s2, 256
    s_cbranch_scc1 {end}
    s_load_dwordx2 s[4:5], s[0:1], {A_WS}
    v_lshrrev_b32 v1, 6, v0
    v_and_b32 v2, 63, v0
    v_readfirstlane_b32 s26, v1
    v_lshlrev_b32 v3, 4, v2
    """)
    tile_ids(k, 24, 25, 32, 33)
    k(f"""
    s_and_b32 s27, s26, 3
    s_lshl_b32 s32, s24, 2
    s_add_u32 s27, s27, s32
    s_lshr_b32 s32, s26, 2
    s_lshl_b32 s33, s25, 1
    s_add_u32 s32, s32, s33
    s_lshl_b32 s35, s27, 16
    s_lshl_b32 s32, s32, 11
    s_add_u32 s35, s35, s32
    s_add_u32 s36, s35, {QF}
    s_add_u32 s35, s35, {OF}
    s_lshl_b32 s29, s26, 12
    s_mov_b32 s30, s29
    s_waitcnt lgkmcnt(0)
    """)
    srd(k, 16, "s4", "s5", WS_SIZE)
    srd_off(k, 12, 4, KV, 256 * KB)
    k(f"buffer_load_dwordx4 {vr(Qr,4)}, v3, s[16:19], s36 offen")
    k(f"buffer_load_dwordx4 {vr(Qr+4,4)}, v3, s[16:19], s36 offen offset:1024")
    def dma_chunk():
        k("s_mov_b32 m0, s30")
        k("s_add_u32 s30, s30, 0x8000")
        for p in range(4):
            k(f"buffer_load_dwordx4 v3, s[12:15], s29 offen offset:{1024*p} lds")
        k("s_and_b32 s30, s30, 0x1ffff")
        k("s_add_u32 s29, s29, 0x8000")
    for c in range(3): dma_chunk()
    k(f"""
    v_lshrrev_b32 v6, 4, v2
    v_lshrrev_b32 v7, 2, v2
    v_xor_b32 v6, v6, v7
    v_and_b32 v6, 1, v6
    v_cmp_eq_u32 vcc, 0, v6
    v_mov_b32 v7, 0x3f803f80
    v_mov_b32 v{vcur}, v3
    v_add_u32 v{vnxt}, 0x8000, v3
    """)
    for i in range(4): k(f"v_cndmask_b32 v{ON+i}, 0, v7, vcc")
    for i in range(16): k(f"v_mov_b32 v{Or+i}, 0")
    for i in range(4): k(f"v_mov_b32 v{Lr+i}, 0")
    for i in range(8): k(f"v_mov_b32 v{Pr+i}, 0")
    for i in range(8): k(f"v_mov_b32 v{VBUF+8+i}, 0")
    k("s_waitcnt vmcnt(8)")
    k("s_barrier")
    for f in range(2): k(f"ds_read_b128 {vr(KBUF+4*f,4)}, v{vcur} offset:{1024*f}")
    for f in range(2): k(f"ds_read_b128 {vr(KBUF+8+4*f,4)}, v{vcur} offset:{4096+1024*f}")
    for f in range(2): k(f"ds_read_b128 {vr(VBUF+4*f,4)}, v{vcur} offset:{2048+1024*f}")
    k("s_waitcnt lgkmcnt(4)")
    k(f"v_mfma_f32_32x32x16_bf16 {vr(S0,16)}, {vr(KBUF,4)}, {vr(Qr,4)}, 0")
    k(f"v_mfma_f32_32x32x16_bf16 {vr(S0,16)}, {vr(KBUF+4,4)}, {vr(Qr+4,4)}, {vr(S0,16)}")
    k.nop(12)
    def tile_max(dst, src, tmp):
        k(f"v_max3_f32 v{dst}, v{src}, v{src+1}, v{src+2}")
        for i in range(3, 15, 2): k(f"v_max3_f32 v{dst}, v{dst}, v{src+i}, v{src+i+1}")
        k(f"v_max_f32 v{dst}, v{dst}, v{src+15}")
        k(f"v_mov_b32 v{tmp}, v{dst}")
        k.nop(2)
        k(f"v_permlane32_swap_b32 v{dst}, v{tmp}")
        k.nop(1)
        k(f"v_max_f32 v{dst}, v{dst}, v{tmp}")
    tile_max(6, S0, 7)
    for i in range(16): k(f"v_sub_f32 v{CI+i}, 0, v6")
    for i in range(16): k(f"v_sub_f32 v{S0+i}, v{S0+i}, v6")
    lp = k.label("loop")
    k("s_mov_b32 s31, 8")
    k(f"{lp}:")
    for t in range(8):
        c, n = S[t % 2], S[(t + 1) % 2]
        e = lambda i: k(f"v_exp_f32 v{c+i}, v{c+i}")
        cv = lambda i: k(f"v_cvt_pk_bf16_f32 v{Pr+i}, v{c+2*i}, v{c+2*i+1}")
        Kn = KBUF + 8 * ((t + 1) % 2)
        Kl = KBUF + 8 * (t % 2)
        Vc = VBUF + 8 * (t % 2)
        Vp = VBUF + 8 * ((t + 1) % 2)
        def rd(dst, tile, off):
            base = vcur if tile < 8 else vnxt
            k(f"ds_read_b128 {vr(dst,4)}, v{base} offset:{(tile % 8)*4096 + off}")
        k("s_waitcnt lgkmcnt(0)")
        if t == 6:
            k("s_waitcnt vmcnt(4)")
            k("s_barrier")
        rd(Kl, t + 2, 0); rd(Kl + 4, t + 2, 1024)
        e(0); e(1); e(2)
        k(f"v_mfma_f32_32x32x16_bf16 {vr(Or,16)}, {vr(Vp+4,4)}, {vr(Pr+4,4)}, {vr(Or,16)}")
        e(3); e(4); e(5)
        rd(Vp, t + 1, 2048); rd(Vp + 4, t + 1, 3072)
        k(f"v_mfma_f32_16x16x32_bf16 {vr(Lr,4)}, {vr(ON,4)}, {vr(Pr+4,4)}, {vr(Lr,4)}")
        e(6); e(7); cv(0); cv(1)
        k(f"v_mfma_f32_32x32x16_bf16 {vr(n,16)}, {vr(Kn,4)}, {vr(Qr,4)}, {vr(CI,16)}")
        cv(2); cv(3); e(8); e(9); e(10)
        k(f"v_mfma_f32_32x32x16_bf16 {vr(n,16)}, {vr(Kn+4,4)}, {vr(Qr+4,4)}, {vr(n,16)}")
        e(11); e(12); e(13)
        k(f"v_mfma_f32_32x32x16_bf16 {vr(Or,16)}, {vr(Vc,4)}, {vr(Pr,4)}, {vr(Or,16)}")
        e(14); e(15); cv(4); cv(5)
        k(f"v_mfma_f32_16x16x32_bf16 {vr(Lr,4)}, {vr(ON,4)}, {vr(Pr,4)}, {vr(Lr,4)}")
        cv(6); cv(7)
        if t == 6: dma_chunk()
    k(f"""
    v_mov_b32 v{vcur}, v{vnxt}
    v_add_u32 v{vnxt}, 0x8000, v{vnxt}
    v_and_b32 v{vnxt}, 0x1ffff, v{vnxt}
    s_sub_u32 s31, s31, 1
    s_cmp_lg_u32 s31, 0
    s_cbranch_scc1 {lp}
    """)
    k(f"v_mfma_f32_32x32x16_bf16 {vr(Or,16)}, {vr(VBUF+8+4,4)}, {vr(Pr+4,4)}, {vr(Or,16)}")
    k(f"v_mfma_f32_16x16x32_bf16 {vr(Lr,4)}, {vr(ON,4)}, {vr(Pr+4,4)}, {vr(Lr,4)}")
    k("s_waitcnt vmcnt(0) lgkmcnt(0)")
    k.nop(12)
    fin, slow = k.label("fin"), k.label("slow")
    k(f"v_mul_f32 v7, 0, v{Or}")
    for i in range(1, 16): k(f"v_fma_f32 v7, 0, v{Or+i}, v7")
    k(f"""
    v_add_f32 v7, v7, v{Lr}
    v_mov_b32 v{S0}, {f32(2.0**100)}
    v_cmp_nle_f32 vcc, v7, v{S0}
    s_cmp_lg_u64 vcc, 0
    s_cbranch_scc1 {slow}
    {fin}:
    v_rcp_f32 v6, v{Lr}
    s_nop 0
    """)
    for i in range(16): k(f"v_mul_f32 v{Or+i}, v{Or+i}, v6")
    for i in range(8): k(f"v_cvt_pk_bf16_f32 v{Pr+i}, v{Or+2*i}, v{Or+2*i+1}")
    for f in range(2): k(f"buffer_store_dwordx4 {vr(Pr+4*f,4)}, v3, s[16:19], s35 offen offset:{1024*f}")
    k(f"{end}:")
    k("s_endpgm")
    k(f"{slow}:")
    vm, va = 94 + 34, 95 + 34
    for i in range(16): k(f"v_mov_b32 v{Or+i}, 0")
    for i in range(4): k(f"v_mov_b32 v{Lr+i}, 0")
    k(f"v_mov_b32 v{vm}, 0xff800000")
    k("s_mov_b32 s29, 0")
    sl = k.label("sloop")
    k(f"{sl}:")
    for f in range(4):
        d = KBUF + 4 * f if f < 2 else VBUF + 4 * (f - 2)
        k(f"buffer_load_dwordx4 {vr(d,4)}, v3, s[12:15], s29 offen offset:{1024*f}")
    k("s_waitcnt vmcnt(0)")
    k(f"v_mfma_f32_32x32x16_bf16 {vr(S0,16)}, {vr(KBUF,4)}, {vr(Qr,4)}, 0")
    k(f"v_mfma_f32_32x32x16_bf16 {vr(S0,16)}, {vr(KBUF+4,4)}, {vr(Qr+4,4)}, {vr(S0,16)}")
    k.nop(12)
    tile_max(6, S0, 7)
    k(f"""
    v_max_f32 v6, v6, v{vm}
    v_sub_f32 v{va}, v{vm}, v6
    v_exp_f32 v{va}, v{va}
    v_mov_b32 v{vm}, v6
    """)
    for i in range(16): k(f"v_sub_f32 v{S0+i}, v{S0+i}, v6")
    for i in range(16): k(f"v_exp_f32 v{S0+i}, v{S0+i}")
    for i in range(16): k(f"v_mul_f32 v{Or+i}, v{Or+i}, v{va}")
    for i in range(4): k(f"v_mul_f32 v{Lr+i}, v{Lr+i}, v{va}")
    for i in range(8): k(f"v_cvt_pk_bf16_f32 v{Pr+i}, v{S0+2*i}, v{S0+2*i+1}")
    k.nop(2)
    for f in range(2):
        k(f"v_mfma_f32_32x32x16_bf16 {vr(Or,16)}, {vr(VBUF+4*f,4)}, {vr(Pr+4*f,4)}, {vr(Or,16)}")
        k(f"v_mfma_f32_16x16x32_bf16 {vr(Lr,4)}, {vr(ON,4)}, {vr(Pr+4*f,4)}, {vr(Lr,4)}")
    k.nop(12)
    k(f"""
    s_add_u32 s29, s29, 4096
    s_cmp_lt_u32 s29, {256*KB}
    s_cbranch_scc1 {sl}
    s_branch {fin}
    """)
    return k, dict(grid=256, block=512, lds=128 * KB, vgpr=132, accum=132)

def build():
    kern = {}
    for k, m in (gen_prep(), gen_qkv("qkv_kernel"), gen_attn("attn_kernel"),
                 gen_res_gemm("wo_kernel", OF, 64, WO, STB),
                 gen_ffn1("ffn1_kernel"),
                 gen_res_gemm("ffn2_kernel", HF, 224, W2, STA),
                 gen_res_gemm("ffn2f_kernel", HF, 224, W2, STA, final=True)):
        kern[k.name] = (k, m)
    order = ["prep_kernel", "qkv_kernel", "attn_kernel", "wo_kernel", "ffn1_kernel", "ffn2_kernel",
             "qkv_kernel", "attn_kernel", "wo_kernel", "ffn1_kernel", "ffn2f_kernel"]
    out = ["; interleaved MQA attention + SiLU FFN, 2 layers; generated by gen/gen.py (hand-written generator)"]
    for n in order:
        m = kern[n][1]
        out.append(f"; @launch kernel={n} grid=({m['grid']},1,1) block=({m['block']},1,1) lds={m['lds']}")
    out.append('.amdgcn_target "amdgcn-amd-amdhsa--gfx950"')
    out.append(".text")
    errs = []
    for n, (k, m) in kern.items():
        errs += check_hazards(k.lines, n)
        out += [f".globl {n}", ".p2align 8", f".type {n},@function", f"{n}:", k.text()]
    out.append('.section .rodata,"a"')
    for n, (k, m) in kern.items():
        out.append(kernel_desc(n, m["vgpr"], m["accum"]))
    return "\n".join(out) + "\n", errs

if __name__ == "__main__":
    txt, errs = build()
    for e in errs: print("HAZARD", e)
    dst = sys.argv[1] if len(sys.argv) > 1 else "interleave_layers__grouped_kv_mqa__dense_activation_silu__prompt.s"
    open(dst, "w").write(txt)
    print("wrote", dst, len(txt), "bytes;", len(errs), "hazards")
```

```python
import sys, os, struct
sys.path.insert(0, os.path.dirname(os.path.abspath(__file__)))
from asmlib import *

KB = 1024
CQ, C1, WPF, XCC = 0x0, 0x10000, 0x30000, 0x31000
WQ, WKV, WO, W1, W2 = 0x100000, 0x300000, 0x400000, 0x600000, 0xD00000
RS = 0x2000000
XIN, OF, XMID, KV, STIN, STMID, FLG, HF = 0x0, 0x400000, 0x800000, 0xC00000, 0xC40000, 0xC80000, 0xCC0000, 0x1000000
F_XIN, F_O, F_XMID, F_H = [FLG + 8192 * i for i in range(4)]
KVF = FLG + 32768
FLG_BYTES = 36864
WS_SIZE = 0x10000000
OOB = 0x7ff00000
A_X, A_WQ, A_WK, A_WV, A_WO, A_BX, A_W1, A_W2, A_OUT, A_DBG, A_WS = [8 * i for i in range(11)]
LOG2E = 1.4426950408889634
def f32(x): return "0x%08x" % struct.unpack("<I", struct.pack("<f", x))[0]
PROF = os.environ.get("PROF") == "1"
FORCE_SAFE = os.environ.get("SAFE") == "1"
PROFB = 0x8000000
SPIN = 1 << 18

CFG = dict(n1=8, f1_n2=14, f2_R=7, f2_AB=28)
for kv in os.environ.get("CFG", "").split(","):
    if "=" in kv:
        a, b = kv.split("="); CFG[a] = int(b)

sWS, sOUT = 4, 6
SA, SW, SR, SG, SP, SD = 8, 12, 16, 20, 24, 36
sAo, sWo, sLw, sCt = 28, 29, 30, 31
sMT, sNT, sWV, sTB, sLY, sMODE, sSEL = 52, 53, 54, 55, 56, 57, 58
sG1 = 60
sPs, sPss, sPd, sPds, sCorr, sSp1, sSp2, sPsz, sDsz = 61, 62, 63, 64, 65, 66, 67, 74, 75
sL2E = 68
sKVr, sKVf = 76, 77
sCur, sNxt, sDst, sXCC = 78, 79, 80, 81
sTBs = 82
vLane, vL0, vL1, vPoll, vPollA, vOne = 2, 3, 4, 250, 251, 252
vPk, vTr = 253, 254
vTch, vDum = 249, 248
sXS = 86

def touch(k, base, tile_bytes, nbytes, only_layer=None):
    step = 4096 if CFG.get('t64', 1) else 8192
    per = nbytes // 8
    assert per % step == 0
    k(f"s_mul_i32 s33, s{sNT}, {tile_bytes}")
    k(f"s_mul_i32 s32, s{sXS}, {per}")
    k(f"s_add_u32 s33, s33, s32")
    k(f"s_add_u32 s33, s33, {base}")
    if only_layer is not None:
        k(f"s_cmp_eq_u32 s{sLY}, {only_layer}")
        k(f"s_cselect_b32 s33, s33, {OOB}")
    for i in range(per // step):
        k(f"buffer_load_dword v{vDum}, v{vTch}, {S4(SG)}, s33 offen")
        if i < per // step - 1: k(f"s_add_u32 s33, s33, {step}")
    return per // step
aX, aID, aON = 228, 244, 252

S4 = lambda d: f"s[{d}:{d+3}]"
def srd(k, d, lo, hi, size):
    if lo != f"s{d}": k(f"s_mov_b32 s{d}, {lo}")
    if hi != f"s{d+1}": k(f"s_mov_b32 s{d+1}, {hi}")
    k(f"s_mov_b32 s{d+2}, {size}")
    k(f"s_mov_b32 s{d+3}, 0x20000")

def srd_off(k, d, base, off, size):
    k(f"s_add_u32 s{d}, s{base}, {off}")
    k(f"s_addc_u32 s{d+1}, s{base+1}, 0")
    k(f"s_mov_b32 s{d+2}, {size}")
    k(f"s_mov_b32 s{d+3}, 0x20000")

def stamp(k):
    if not PROF: return
    k("s_memtime s[70:71]")
    k("s_waitcnt lgkmcnt(0)")
    k("s_mov_b32 s73, m0")
    k("s_mov_b32 m0, s72")
    k("s_nop 0")
    k("v_writelane_b32 v255, s70, m0")
    k("s_mov_b32 m0, s73")
    k("s_add_u32 s72, s72, 1")

def split3_pack(k, src, t1, t2, out, side):
    k(f"""
    v_and_b32 v{t1}, 0xffff0000, v{src}
    v_sub_f32 v{t1}, v{src}, v{t1}
    v_and_b32 v{t2}, 0xffff0000, v{t1}
    v_sub_f32 v{t2}, v{t1}, v{t2}
    """)
    p1, p2, p3 = src, t1, t2
    pk = lambda d, lo, hi: k(f"v_perm_b32 v{d}, v{hi}, v{lo}, s{sSEL}")
    if side == "A":
        pk(out, p1, p2); pk(out + 1, p1, p2); pk(out + 2, p3, p1)
    else:
        pk(out, p1, p1); pk(out + 1, p2, p2); pk(out + 2, p1, p3)
    k(f"v_mov_b32 v{out+3}, 0")

def tr_addr(k, d, t):
    k(f"""
    v_lshrrev_b32 v{d}, 5, v{vLane}
    v_bfe_u32 v{t}, v{vLane}, 2, 2
    v_lshl_add_u32 v{d}, v{d}, 2, v{t}
    v_lshlrev_b32 v{d}, 6, v{d}
    v_bfe_u32 v{t}, v{vLane}, 4, 1
    v_lshl_add_u32 v{d}, v{t}, 5, v{d}
    v_and_b32 v{t}, 3, v{vLane}
    v_lshl_add_u32 v{d}, v{t}, 3, v{d}
    """)

NX, NQ = 128, 66
def gen_prep(code_kb):
    k = K("prep_kernel")
    tot = NX + NQ
    end = k.label("end")
    R0 = RS
    k(f"""
    s_cmp_ge_u32 s2, {tot}
    s_cbranch_scc1 {end}
    s_load_dwordx2 s[4:5], s[0:1], {A_WS}
    s_load_dwordx4 s[36:39], s[0:1], {A_X}
    s_load_dwordx4 s[40:43], s[0:1], {A_WK}
    s_load_dwordx2 s[48:49], s[0:1], {A_WO}
    v_lshrrev_b32 v1, 6, v0
    v_and_b32 v2, 63, v0
    v_readfirstlane_b32 s26, v1
    v_lshlrev_b32 v3, 4, v2
    s_mov_b32 s{sSEL}, 0x07060302
    s_waitcnt lgkmcnt(0)
    """)
    srd(k, 16, "s4", "s5", WS_SIZE)
    lw = k.label("w")
    k(f"s_cmp_ge_u32 s2, {NX}")
    k(f"s_cbranch_scc1 {lw}")
    srd(k, 8, "s36", "s37", 2048 * 2048)
    k(f"""
    s_and_b32 s24, s2, 7
    s_lshl_b32 s24, s24, 4
    s_lshr_b32 s25, s2, 3
    s_add_u32 s24, s24, s25
    s_lshl_b32 s24, s24, 3
    s_add_u32 s24, s24, s26
    s_lshr_b32 s27, s24, 4
    s_and_b32 s25, s24, 15
    v_and_b32 v4, 31, v2
    v_lshrrev_b32 v5, 5, v2
    v_lshlrev_b32 v6, 11, v4
    v_lshl_add_u32 v6, v5, 4, v6
    s_lshl_b32 s28, s27, 16
    s_lshl_b32 s29, s25, 7
    s_add_u32 s28, s28, s29
    """)
    for q in range(4):
        k(f"buffer_load_dwordx4 v[{8+4*q}:{11+4*q}], v6, s[8:11], s28 offen offset:{32*q}")
    nc = k.label("nc")
    k(f"""
    s_lshr_b32 s44, s2, 3
    s_lshl_b32 s44, s44, 3
    s_add_u32 s44, s44, s26
    s_cmp_ge_u32 s44, {code_kb}
    s_cbranch_scc1 {nc}
    s_getpc_b64 s[46:47]
    Lpc_prep:
    s_add_u32 s46, s46, main_kernel-Lpc_prep
    s_addc_u32 s47, s47, 0
    s_lshl_b32 s44, s44, 10
    v_add_u32 v30, s44, v3
    global_load_dwordx4 v[32:35], v30, s[46:47]
    {nc}:
    """)
    k(f"""
    v_mov_b32 v36, 0
    v_mov_b32 v37, 0
    v_mov_b32 v38, 0
    v_mov_b32 v39, 0
    s_lshl_b32 s44, s24, 10
    s_add_u32 s45, s44, {R0 + FLG}
    s_add_u32 s46, s44, {2*RS + FLG - FLG_BYTES}
    s_cmp_lt_u32 s24, 36
    s_cselect_b32 s45, s45, s46
    s_add_u32 s46, s44, {WPF - 2*FLG_BYTES + (1<<32) if WPF - 2*FLG_BYTES < 0 else WPF - 2*FLG_BYTES}
    s_cmp_lt_u32 s24, 72
    s_cselect_b32 s45, s45, s46
    s_cmp_lt_u32 s24, 80
    s_cselect_b32 s45, s45, {OOB}
    buffer_store_dwordx4 v[36:39], v3, s[16:19], s45 offen
    v_mov_b32 v24, 0
    v_mov_b32 v25, 0
    v_mov_b32 v26, 0x3f803f80
    s_lshl_b32 s28, s27, 16
    s_lshl_b32 s29, s25, 12
    s_add_u32 s28, s28, s29
    s_add_u32 s28, s28, {R0 + XIN}
    s_lshl_b32 s30, s25, 14
    s_lshl_b32 s31, s27, 8
    s_add_u32 s30, s30, s31
    s_add_u32 s30, s30, {R0 + STIN}
    v_lshlrev_b32 v7, 3, v4
    s_waitcnt vmcnt(1)
    """)
    for i in range(16):
        k(f"v_dot2_f32_bf16 v24, v{8+i}, v26, v24")
        k(f"v_dot2_f32_bf16 v25, v{8+i}, v{8+i}, v25")
    for q in range(4):
        b = 8 + 4 * q
        k(f"v_permlane32_swap_b32 v{b}, v{b+2}")
        k(f"v_permlane32_swap_b32 v{b+1}, v{b+3}")
    for q in range(4):
        k(f"buffer_store_dwordx4 v[{8+4*q}:{11+4*q}], v3, s[16:19], s28 offen offset:{1024*q}")
    k("v_mov_b32 v27, v24")
    k("v_mov_b32 v28, v25")
    k.nop(2)
    k("v_permlane32_swap_b32 v24, v27")
    k("v_permlane32_swap_b32 v25, v28")
    k.nop(1)
    k("v_add_f32 v24, v24, v27")
    k("v_add_f32 v25, v25, v28")
    k("buffer_store_dwordx2 v[24:25], v7, s[16:19], s30 offen")
    k("s_endpgm")
    k(f"{lw}:")
    join, lkv = k.label("join"), k.label("kv")
    k(f"""
    s_lshl_b32 s30, s26, 3
    s_cmp_ge_u32 s2, {NX+64}
    s_cbranch_scc1 {lkv}
    s_cmp_ge_u32 s2, {NX+32}
    s_cselect_b32 s8, s48, s38
    s_cselect_b32 s9, s49, s39
    s_cselect_b32 s50, {WO >> 20}, {WQ >> 20}
    s_cselect_b32 s51, {OOB >> 20}, 0
    s_lshl_b32 s50, s50, 20
    s_lshl_b32 s51, s51, 20
    s_mov_b32 s10, {1024*2048}
    s_mov_b32 s11, 0x20000
    s_mov_b32 s28, 2048
    s_and_b32 s29, s2, 31
    s_and_b32 s35, s29, 7
    s_lshl_b32 s35, s35, 2
    s_lshr_b32 s29, s29, 3
    s_add_u32 s29, s29, s35
    s_lshr_b32 s31, s29, 1
    s_lshl_b32 s31, s31, 7
    s_and_b32 s35, s29, 1
    s_add_u32 s31, s31, s35
    s_lshl_b32 s31, s31, 10
    s_add_u32 s31, s31, s50
    s_mov_b32 s32, 2048
    s_lshl_b32 s33, s29, 10
    s_add_u32 s33, s33, {CQ}
    s_add_u32 s33, s33, s51
    s_branch {join}
    {lkv}:
    s_cmp_eq_u32 s2, {NX+64}
    s_cselect_b32 s8, s40, s42
    s_cselect_b32 s9, s41, s43
    s_cselect_b32 s31, 0, 64
    s_cselect_b32 s33, 32, 33
    s_lshl_b32 s31, s31, 10
    s_add_u32 s31, s31, {WKV}
    s_lshl_b32 s33, s33, 10
    s_add_u32 s33, s33, {CQ}
    s_mov_b32 s10, {1024*64}
    s_mov_b32 s11, 0x20000
    s_mov_b32 s28, 64
    s_mov_b32 s29, 0
    s_mov_b32 s32, 1024
    {join}:
    v_lshrrev_b32 v4, 2, v2
    v_mul_lo_u32 v4, v4, s28
    v_and_b32 v5, 3, v2
    v_lshl_add_u32 v4, v5, 4, v4
    s_lshl_b32 s28, s28, 4
    s_mul_i32 s24, s30, s28
    s_lshl_b32 s25, s29, 6
    s_add_u32 s24, s24, s25
    s_lshl_b32 s27, s26, 13
    """)
    for i in range(8):
        k(f"s_add_u32 m0, s27, {1024*i}")
        k("s_nop 0")
        k(f"buffer_load_dwordx4 v4, s[8:11], s24 offen lds")
        k(f"s_add_u32 s24, s24, s28")
    tr_addr(k, 5, 6)
    k(f"""
    v_add_u32 v5, s27, v5
    s_mul_i32 s24, s30, s32
    s_add_u32 s24, s24, s31
    v_mov_b32 v60, 0x3f803f80
    v_mov_b32 v61, 0x3f803f80
    v_mov_b32 v62, 0x3f803f80
    v_mov_b32 v63, 0x3f803f80
    s_waitcnt vmcnt(0)
    """)
    for i in range(8):
        k(f"ds_read_b64_tr_b16 v[{8+4*i}:{9+4*i}], v5 offset:{1024*i}")
        k(f"ds_read_b64_tr_b16 v[{10+4*i}:{11+4*i}], v5 offset:{1024*i+512}")
        if i == 3: k("s_waitcnt lgkmcnt(0)")
    k("s_waitcnt lgkmcnt(0)")
    for i in range(8):
        k(f"buffer_store_dwordx4 v[{8+4*i}:{11+4*i}], v3, s[16:19], s24 offen")
        k(f"s_add_u32 s24, s24, s32")
    for i in range(8):
        k(f"v_mfma_f32_32x32x16_bf16 v[40:55], v[60:63], v[{8+4*i}:{11+4*i}], {'0' if i == 0 else 'v[40:55]'}")
    k(f"""
    v_and_b32 v5, 31, v2
    v_lshlrev_b32 v5, 2, v5
    v_add_u32 v5, 0x10000, v5
    s_lshl_b32 s24, s26, 7
    v_add_u32 v6, s24, v5
    """)
    k.nop(12)
    k(f"""
    ds_write_b32 v6, v40
    s_waitcnt lgkmcnt(0)
    s_barrier
    s_cmp_lg_u32 s26, 0
    s_cbranch_scc1 {end}
    """)
    for i in range(8):
        k(f"ds_read_b32 v{8+i}, v5 offset:{128*i}")
    k("s_waitcnt lgkmcnt(0)")
    for i in range(1, 8):
        k(f"v_add_f32 v8, v8, v{8+i}")
    k("v_cmp_gt_u32 vcc, 32, v2")
    k.nop(2)
    k("v_cndmask_b32 v8, 0, v8, vcc")
    split3_pack(k, 8, 9, 10, 12, "A")
    k("buffer_store_dwordx4 v[12:15], v3, s[16:19], s33 offen")
    k(f"{end}:")
    k("s_endpgm")
    return k, dict(grid=tot, block=512, lds=65536 + 1024, vgpr=64, accum=64)

def emit_items(k, items):
    for x in items: k(x[-1])
def nvm(items): return len([x for x in items if x[0] == "vm"])

def lds_base(off):
    return (vL0, off) if off < 65536 else (vL1, off - 65536) if off < 131072 else (None, None)

class Ring:
    def __init__(self, NB, KS, R, NST, AB, L, acc, wf, act):
        self.__dict__.update(locals())
        self.Q = KS * NB; self.SLOT = self.Q * KB; self.P = self.Q // 4; self.RB = L + 1; self.BODY = R * self.Q
        assert self.BODY % self.RB == 0 and (R * KS) % AB == 0 and NST % R == 0 and AB % 4 == 0
        Q, P, BODY = self.Q, self.P, self.BODY
        self.sched = {}
        for s in range(R):
            q0 = s * Q + Q - L
            for p, o in enumerate(self.dma_ops(s + R - 1)):
                qq, rel = q0 + (p * Q) // P, 0
                if qq >= BODY: qq -= BODY; rel = -R
                self.sched.setdefault(qq, []).extend(
                    [(x[0], (x[1][0], x[1][1] + rel, x[1][2]), x[2]) if x[0] == "vm" else x for x in o])
        wrapped = {x[1] for lst in self.sched.values() for x in lst if x[0] == "vm" and x[1][1] == R - 2}
        self.wpro = []
        for s in range(R - 1):
            for p, o in enumerate(self.dma_ops(s)):
                if ("W", s, p) not in wrapped: self.wpro.append(o)
    def setup_w(self, k, w_base, KBA):
        k(f"s_mul_i32 s33, s{sNT}, {KBA*self.NB*KB}")
        k(f"s_add_u32 s33, s33, {w_base}")
        srd_off(k, SW, sWS, "s33", KBA * self.NB * KB)
        k(f"s_mul_i32 s{sWo}, s{sWV}, {self.P*KB}")
        k(f"s_mov_b32 s{sLw}, s{sWo}")
    def dma_ops(self, s):
        out = []
        slot = s % self.R
        for p in range(self.P):
            o = []
            g = p // 4
            if p % 4 == 0:
                o.append(("txt", f"s_add_u32 m0, s{sLw}, {slot*self.SLOT + 4096*g}"))
                o.append(("txt", f"s_add_u32 s{sG1}, s{sWo}, {4096*g}" if g > 0 else "s_nop 0"))
            so = f"s{sWo}" if g == 0 else f"s{sG1}"
            o.append(("vm", ("W", s, p), f"buffer_load_dwordx4 v{vL0}, {S4(SW)}, {so} offen offset:{(p%4)*1024} lds"))
            if p == self.P - 1: o.append(("txt", f"s_add_u32 s{sWo}, s{sWo}, {self.SLOT}"))
            out.append(o)
        return out
    def act_load(self, lst, t):
        lst.append(("vm", ("A", t), f"buffer_load_dwordx4 {ar(self.act + 4*(t % self.AB), 4)}, v{vL0}, {S4(SA)}, s{sAo} offen offset:{(t%4)*1024} sc1"))
        if t % 4 == 3: lst.append(("txt", f"s_add_u32 s{sAo}, s{sAo}, 4096"))
    def dsread(self, q):
        base, off = lds_base((q % self.BODY) * KB)
        return f"ds_read_b128 {vr(self.wf + 4*(q % self.RB), 4)}, v{base} offset:{off}"
    def main(self, k, pro, cold=None, spec=None):
        NB, KS, R, Q, P, L, AB, BODY, RB = self.NB, self.KS, self.R, self.Q, self.P, self.L, self.AB, self.BODY, self.RB
        apro = []
        for t in range(AB): self.act_load(apro, t)
        pro2 = [("wait", ("W", 0, P - 1)), ("txt", "s_barrier")] + [("txt", self.dsread(q)) for q in range(L)]
        body = []
        for q in range(BODY):
            t, nb = q // NB, q % NB
            if nb == 0: body.append(("wait", ("A", t)))
            body.append(("txt", f"s_waitcnt lgkmcnt({L-1})"))
            a = self.acc + 16 * nb
            body.append(("txt", f"v_mfma_f32_32x32x16_bf16 {vr(a,16)}, {vr(self.wf + 4*(q % RB), 4)}, {ar(self.act + 4*(t % AB), 4)}, {vr(a,16)}"))
            if (q + L) % Q == 0:
                body.append(("wait", ("W", (q + L) // Q, P - 1)))
                body.append(("txt", "s_barrier"))
            body.append(("txt", self.dsread(q + L)))
            if nb == NB - 1: self.act_load(body, t + AB)
            body += self.sched.get(q, [])
        NIT = self.NST // R
        waits, issued = {}, []
        def shift(tag, it):
            return (tag[0], tag[1] + it * R * KS) if tag[0] == "A" else (tag[0], tag[1] + it * R, tag[2])
        def run(lst, it, key):
            for i, x in enumerate(lst):
                if x[0] == "vm": issued.append(shift(x[1], it))
                elif x[0] == "wait":
                    n = len(issued) - 1 - issued.index(shift(x[1], it))
                    waits[(key, i)] = min(waits.get((key, i), 63), n)
        run([x for o in self.wpro for x in o], 0, "w"); run(apro, 0, "a"); run(pro2, 0, "p2")
        for it in range(NIT): run(body, it, "b")
        def emit(lst, key):
            for i, x in enumerate(lst):
                if x[0] == "wait": k(f"s_waitcnt vmcnt({waits[(key, i)]})")
                else: k(x[-1])
        emit(apro, "a")
        pro(k, AB)
        emit(pro2, "p2")
        lp = k.label("loop")
        stamp(k)
        k(f"s_mov_b32 s{sCt}, {NIT}")
        k(f"{lp}:")
        emit(body, "b")
        k(f"s_sub_u32 s{sCt}, s{sCt}, 1")
        if spec:
            sp = k.label("spec")
            k(f"s_cmp_eq_u32 s{sCt}, {spec[0]}")
            k(f"s_cbranch_scc1 {sp}")
            cold(f"{sp}:")
            spec[1](cold)
            cold(f"s_branch {lp}")
        k(f"s_cmp_lg_u32 s{sCt}, 0")
        k(f"s_cbranch_scc1 {lp}")
        stamp(k)

def resident_w_pieces():
    out = []
    for p in range(32):
        o = []
        if p % 4 == 0:
            o.append(("txt", f"s_add_u32 m0, s{sLw}, {1024*p}"))
            o.append(("txt", f"s_add_u32 s{sG1}, s{sWo}, {1024*p}"))
        o.append(("vm", ("W", 0, p), f"buffer_load_dwordx4 v{vL0}, {S4(SG)}, s{sG1} offen offset:{(p%4)*1024} lds"))
        out.append(o)
    return out
def resident_setup(k, w_base):
    k(f"""
    s_lshl_b32 s{sLw}, s{sWV}, 15
    s_lshl_b32 s{sWo}, s{sNT}, 17
    s_add_u32 s{sWo}, s{sWo}, s{sLw}
    s_add_u32 s{sWo}, s{sWo}, {w_base}
    """)

def act_ld(k, dst, t):
    k(f"buffer_load_dwordx4 {ar(dst,4)}, v{vL0}, {S4(SR)}, s{sAo} offen offset:{(t%4)*1024} sc1")
    if t % 4 == 3: k(f"s_add_u32 s{sAo}, s{sAo}, 4096")

def resident_loop(k, acc, wf, act, AB, L=7, hook=None):
    RB = L + 1
    def rd(q):
        base, off = lds_base(q * KB)
        k(f"ds_read_b128 {vr(wf + 4*(q % RB), 4)}, v{base} offset:{off}")
    for q in range(L): rd(q)
    stamp(k)
    for q in range(128):
        t, nb = q // 2, q % 2
        if nb == 0:
            k(f"s_waitcnt vmcnt({min(AB, 64 - t) - 1})")
            if hook: hook(t)
        k(f"s_waitcnt lgkmcnt({min(L, 128 - q) - 1})")
        a = acc + 16 * nb
        k(f"v_mfma_f32_32x32x16_bf16 {vr(a,16)}, {vr(wf + 4*(q % RB), 4)}, {ar(act + 4*(t % AB), 4)}, {vr(a,16) if t > 0 else '0'}")
        if q + L < 128: rd(q + L)
        if nb == 1 and t + AB < 64: act_ld(k, act + 4 * (t % AB), t + AB)
    stamp(k)

def stats_issue(k, ST, vst, voff):
    k(f"""
    v_lshrrev_b32 v{voff}, 5, v{vLane}
    v_lshlrev_b32 v{voff}, 17, v{voff}
    v_and_b32 v{vst}, 31, v{vLane}
    v_lshl_add_u32 v{voff}, v{vst}, 3, v{voff}
    s_lshl_b32 s33, s{sTB}, 8
    s_add_u32 s33, s33, {ST}
    """)
    for i in range(8):
        k(f"buffer_load_dwordx2 {vr(vst+2*i, 2)}, v{voff}, {S4(SR)}, s33 offen sc1")
        if i < 7: k("s_add_u32 s33, s33, 16384")

def stats_finish(k, vst, vmean, vrstd):
    for i in range(1, 8):
        k(f"v_add_f32 v{vst}, v{vst}, v{vst+2*i}")
        k(f"v_add_f32 v{vst+1}, v{vst+1}, v{vst+2*i+1}")
    k(f"v_mov_b32 v{vst+2}, v{vst}")
    k(f"v_mov_b32 v{vst+3}, v{vst+1}")
    k.nop(2)
    k(f"v_permlane32_swap_b32 v{vst}, v{vst+2}")
    k(f"v_permlane32_swap_b32 v{vst+1}, v{vst+3}")
    k.nop(1)
    k(f"""
    v_add_f32 v{vst}, v{vst}, v{vst+2}
    v_add_f32 v{vst+1}, v{vst+1}, v{vst+3}
    v_mul_f32 v{vmean}, {f32(-1.0/1024)}, v{vst}
    v_mul_f32 v{vst+1}, {f32(1.0/1024)}, v{vst+1}
    v_fma_f32 v{vst+1}, -v{vmean}, v{vmean}, v{vst+1}
    v_max_f32 v{vst+1}, 0, v{vst+1}
    v_add_f32 v{vst+1}, {f32(1e-5)}, v{vst+1}
    v_rsq_f32 v{vrstd}, v{vst+1}
    """)
    k.nop(1)

def spin_check(k, load, regs, nwait, cold):
    ok, sp = k.label("ok"), k.label("spin")
    def test(kk):
        r = regs[0]
        if len(regs) > 1:
            kk(f"v_min_u32 v{regs[0]}, v{regs[0]}, v{regs[1]}")
            for x in regs[2:]: kk(f"v_min_u32 v{regs[0]}, v{regs[0]}, v{x}")
        kk(f"v_cmp_eq_u32 vcc, 0, v{r}")
        kk("s_cmp_lg_u64 vcc, 0")
    k(f"s_waitcnt vmcnt({nwait})")
    test(k)
    k(f"s_cbranch_scc1 {sp}")
    k(f"{ok}:")
    c = cold
    lp = k.label("sl")
    c(f"{sp}:")
    c(f"s_mov_b32 s32, {SPIN}")
    c(f"{lp}:")
    c(load)
    c("s_waitcnt vmcnt(0)")
    test(c)
    c(f"s_cbranch_scc0 {ok}")
    c("s_sub_u32 s32, s32, 1")
    c("s_cmp_lg_u32 s32, 0")
    c(f"s_cbranch_scc1 {lp}")
    c(f"s_branch {ok}")

def handoff(k, cold, pieces, n1, n2, fpub, fwait, vpoll, vtmp):
    nv = lambda ps: sum(nvm(p) for p in ps)
    for p in pieces[:n1]: emit_items(k, p)
    safe, back = k.label("safe"), k.label("back")
    k(f"""
    s_lshl_b32 s33, s{sTB}, 7
    s_lshl_b32 s32, s{sNT}, 2
    s_add_u32 s33, s33, s32
    s_add_u32 s33, s33, {fpub}
    s_cmp_lg_u32 s{sMODE}, 0
    s_cbranch_scc1 {safe}
    s_waitcnt vmcnt({nv(pieces[:n1])})
    s_mov_b64 exec, 1
    buffer_store_dword v{vOne}, off, {S4(SR)}, s33
    s_mov_b64 exec, -1
    {back}:
    """)
    cold(f"""
    {safe}:
    s_waitcnt vmcnt(0)
    buffer_wbl2 sc1
    s_waitcnt vmcnt(0)
    s_mov_b64 exec, 1
    buffer_store_dword v{vOne}, off, {S4(SR)}, s33 sc1
    s_mov_b64 exec, -1
    s_branch {back}
    """)
    stamp(k)
    for p in pieces[n1:n2]: emit_items(k, p)
    k(f"s_mov_b32 s35, {fwait}")
    load = f"buffer_load_dword v{vtmp}, v{vpoll}, {S4(SR)}, s35 offen sc1"
    k(load)
    for p in pieces[n2:]: emit_items(k, p)
    spin_check(k, load, [vtmp], nv(pieces[n2:]), cold)
    acq, back2 = k.label("acq"), k.label("back")
    k(f"s_cmp_lg_u32 s{sMODE}, 0")
    k(f"s_cbranch_scc1 {acq}")
    k(f"{back2}:")
    cold(f"""
    {acq}:
    buffer_inv sc1
    s_waitcnt vmcnt(0)
    s_branch {back2}
    """)
    stamp(k)

def x_epilogue(k, acc, pk, XO, STO):
    k(f"""
    v_mov_b32 v{pk+16}, 0
    v_mov_b32 v{pk+17}, 0
    v_mov_b32 v{pk+18}, 0x3f803f80
    v_and_b32 v5, 31, v{vLane}
    v_lshlrev_b32 v5, 3, v5
    s_lshl_b32 s35, s{sTB}, 16
    s_lshl_b32 s33, s{sNT}, 12
    s_add_u32 s35, s35, s33
    s_add_u32 s35, s35, {XO}
    s_lshl_b32 s32, s{sNT}, 14
    s_lshl_b32 s33, s{sTB}, 8
    s_add_u32 s32, s32, s33
    s_add_u32 s32, s32, {STO}
    """)
    for i in range(16): k(f"v_cvt_pk_bf16_f32 v{pk+i}, v{acc+2*i}, v{acc+2*i+1}")
    for q in range(4):
        k(f"buffer_store_dwordx4 {vr(pk+4*q,4)}, v{vL0}, {S4(SR)}, s35 offen offset:{1024*q}")
    for i in range(16):
        k(f"v_dot2_f32_bf16 v{pk+16}, v{pk+i}, v{pk+18}, v{pk+16}")
        k(f"v_dot2_f32_bf16 v{pk+17}, v{pk+i}, v{pk+i}, v{pk+17}")
    k.nop(3)
    k(f"v_mov_b32 v{pk+20}, v{pk+16}")
    k(f"v_mov_b32 v{pk+21}, v{pk+17}")
    k.nop(2)
    k(f"v_permlane32_swap_b32 v{pk+16}, v{pk+20}")
    k(f"v_permlane32_swap_b32 v{pk+17}, v{pk+21}")
    k.nop(1)
    k(f"v_add_f32 v{pk+16}, v{pk+16}, v{pk+20}")
    k(f"v_add_f32 v{pk+17}, v{pk+17}, v{pk+21}")
    k(f"buffer_store_dwordx2 {vr(pk+16,2)}, v5, {S4(SR)}, s32 offen")
    for i in range(16): k(f"v_accvgpr_write_b32 a{aX+i}, v{pk+i}")

def residual(k, acc):
    for nb in range(2):
        for half in range(2):
            a = acc + 16 * nb
            k(f"v_mfma_f32_32x32x16_bf16 {vr(a,16)}, {ar(aID+4*half,4)}, {ar(aX+4*(2*nb+half),4)}, {vr(a,16)}")

aWKV, aCQ = 128, 192
def phaseA_pieces():
    ps = resident_w_pieces()
    ex = []
    for i in range(16):
        o = []
        if i % 4 == 0: o.append(("txt", f"s_add_u32 s34, s83, {1024*i}"))
        o.append(("vm", ("X", i), f"buffer_load_dwordx4 {ar(aWKV+4*i,4)}, v{vL0}, {S4(SG)}, s34 offen offset:{(i%4)*1024}"))
        ex.append(o)
    ex.append([("txt", f"s_lshl_b32 s34, s{sNT}, 11"), ("txt", f"s_add_u32 s34, s34, {CQ}"),
               ("vm", ("X", 16), f"buffer_load_dwordx4 {ar(aCQ,4)}, v{vL0}, {S4(SG)}, s34 offen")])
    ex.append([("vm", ("X", 17), f"buffer_load_dwordx4 {ar(aCQ+4,4)}, v{vL0}, {S4(SG)}, s34 offen offset:1024")])
    ex.append([("vm", ("X", 18), f"buffer_load_dwordx4 {ar(aCQ+8,4)}, v{vL0}, {S4(SG)}, s84 offen")])
    return ex + ps[:NPRE]
NPRE = CFG.get("npre", 12)

def gen_main():
    k = K("main_kernel")
    cold = K("main_cold")
    k.uid = 1000
    end = k.label("end")
    QS = (32 ** -0.5) * LOG2E
    k(f"""
    s_cmp_ge_u32 s2, 256
    s_cbranch_scc1 {end}
    s_load_dwordx2 s[4:5], s[0:1], {A_WS}
    s_load_dwordx2 s[6:7], s[0:1], {A_OUT}
    s_load_dwordx4 s[48:51], s[0:1], {A_W1}
    v_lshrrev_b32 v1, 6, v0
    v_and_b32 v{vLane}, 63, v0
    v_readfirstlane_b32 s{sWV}, v1
    v_lshlrev_b32 v{vL0}, 4, v{vLane}
    v_add_u32 v{vL1}, 0x10000, v{vL0}
    s_and_b32 s{sMT}, s2, 7
    s_lshl_b32 s{sMT}, s{sMT}, 1
    s_lshr_b32 s32, s2, 7
    s_add_u32 s{sMT}, s{sMT}, s32
    s_lshr_b32 s{sNT}, s2, 3
    s_and_b32 s{sNT}, s{sNT}, 15
    s_lshl_b32 s{sTB}, s{sMT}, 2
    s_lshr_b32 s32, s{sNT}, 2
    s_add_u32 s{sTBs}, s{sTB}, s32
    s_add_u32 s{sTB}, s{sTB}, s{sWV}
    s_mov_b32 s{sLY}, 0
    s_mov_b32 s{sMODE}, 1
    s_mov_b32 s{sSEL}, 0x07060302
    s_mov_b32 s{sL2E}, {f32(-LOG2E)}
    s_mov_b32 s{sL2E+1}, {f32(-LOG2E)}
    s_getreg_b32 s{sXCC}, hwreg(HW_REG_XCC_ID)
    s_and_b32 s{sXCC}, s{sXCC}, 15
    s_add_u32 s{sXCC}, s{sXCC}, 1
    """)
    if PROF:
        k("s_mov_b32 s72, 0"); k("v_mov_b32 v255, 0")
        k("s_memrealtime s[70:71]"); k("s_waitcnt lgkmcnt(0)"); k("v_writelane_b32 v255, s70, 61")
    k(f"""
    s_lshr_b32 s32, s{sNT}, 1
    s_and_b32 s32, s32, 1
    s_add_u32 s{sKVr}, s32, 1
    s_lshl_b32 s83, s32, 16
    s_lshl_b32 s33, s{sWV}, 14
    s_add_u32 s83, s83, s33
    s_add_u32 s83, s83, {WKV}
    s_lshl_b32 s84, s32, 10
    s_add_u32 s84, s84, {CQ + 32*KB}
    s_lshl_b32 s{sKVf}, s{sTBs}, 1
    s_add_u32 s{sKVf}, s{sKVf}, s32
    s_lshl_b32 s{sKVf}, s{sKVf}, 2
    s_add_u32 s{sKVf}, s{sKVf}, {KVF}
    s_cmp_eq_u32 s{sTBs}, s{sTB}
    s_cselect_b32 s{sKVf}, s{sKVf}, {OOB}
    s_bitcmp1_b32 s{sNT}, 0
    s_cselect_b32 s{sKVr}, 0, s{sKVr}
    s_cselect_b32 s{sKVf}, {OOB}, s{sKVf}
    s_cselect_b32 s83, {OOB}, s83
    s_cselect_b32 s{sTBs}, s{sTB}, s{sTBs}
    s_waitcnt lgkmcnt(0)
    """)
    srd(k, SG, "s4", "s5", RS)
    srd_off(k, SR, sWS, RS, 2 * RS)
    stamp(k)
    resident_setup(k, WQ)
    pa = phaseA_pieces()
    for p in pa: emit_items(k, p)
    k(f"""
    s_lshl_b32 s35, s{sTB}, 16
    s_lshl_b32 s33, s{sNT}, 12
    s_add_u32 s35, s35, s33
    """)
    for q in range(4): k(f"buffer_load_dwordx4 {ar(aX+4*q,4)}, v{vL0}, {S4(SR)}, s35 offen offset:{1024*q}")
    k(f"""
    v_mov_b32 v{vOne}, s{sXCC}
    s_lshl_b32 s33, s{sMT}, 7
    s_lshl_b32 s32, s{sNT}, 2
    s_add_u32 s33, s33, s32
    s_add_u32 s33, s33, {XCC}
    s_cmp_eq_u32 s{sWV}, 0
    s_cselect_b32 s33, s33, {OOB}
    s_mov_b64 exec, 1
    buffer_store_dword v{vOne}, off, {S4(SG)}, s33 sc1
    s_mov_b64 exec, -1
    """)
    k(f"""
    v_and_b32 v5, 15, v{vLane}
    v_lshlrev_b32 v5, 2, v5
    s_lshl_b32 s32, s{sTB}, 7
    v_add_u32 v{vPoll}, s32, v5
    s_lshl_b32 s32, s{sTBs}, 7
    v_add_u32 v{vPollA}, s32, v5
    v_cmp_gt_u32 vcc, 16, v{vLane}
    v_mov_b32 v{vOne}, 1
    s_nop 0
    v_cndmask_b32 v{vPollA}, v{vPollA}, v{vPoll}, vcc
    """)
    k(f"""
    v_and_b32 v5, 31, v{vLane}
    v_lshrrev_b32 v6, 5, v{vLane}
    v_lshlrev_b32 v6, 2, v6
    v_sub_u32 v5, v5, v6
    v_mov_b32 v6, 0x3f80
    """)
    for half in range(2):
        for i, zb in enumerate((0, 2, 8, 10)):
            d = 8 + 4 * half + i
            k(f"v_subrev_u32 v{d}, {zb + 16*half}, v5")
            k(f"v_cmp_gt_u32 vcc, 2, v{d}")
            k(f"v_lshlrev_b32 v{d}, 4, v{d}")
            k(f"v_lshlrev_b32 v{d}, v{d}, v6")
            k(f"v_cndmask_b32 v{d}, 0, v{d}, vcc")
    for i in range(8): k(f"v_accvgpr_write_b32 a{aID+i}, v{8+i}")
    k(f"""
    v_lshrrev_b32 v6, 4, v{vLane}
    v_lshrrev_b32 v7, 2, v{vLane}
    v_xor_b32 v6, v6, v7
    v_and_b32 v6, 1, v6
    v_cmp_eq_u32 vcc, 0, v6
    v_mov_b32 v7, 0x3f803f80
    s_nop 0
    v_cndmask_b32 v6, 0, v7, vcc
    """)
    k.nop(1)
    for i in range(4): k(f"v_accvgpr_write_b32 a{aON+i}, v6")
    l1, lo_, l2, join = k.label("p1"), k.label("po"), k.label("p2"), k.label("pj")
    k(f"""
    s_and_b32 s32, s2, 7
    s_lshl_b32 s32, s32, 5
    s_lshr_b32 s33, s2, 3
    s_add_u32 s32, s32, s33
    s_lshl_b32 s34, s{sWV}, 4
    s_mov_b32 s{sCorr}, {OOB}
    s_mov_b32 s{sDsz}, {RS}
    s_cmp_ge_u32 s32, 112
    s_cbranch_scc1 {l2}
    s_mov_b32 s{SP}, s48
    s_mov_b32 s{SP+1}, s49
    s_mov_b32 s{sPsz}, {1024*7168}
    s_mov_b32 s{sPss}, 7168
    s_mul_i32 s{sPd}, s32, 9363
    s_lshr_b32 s{sPd}, s{sPd}, 16
    s_mul_i32 s35, s{sPd}, 7
    s_sub_u32 s35, s32, s35
    s_mul_i32 s{sPd}, s{sPd}, {64*7}
    s_add_u32 s{sPd}, s{sPd}, s35
    s_lshl_b32 s{sPd}, s{sPd}, 10
    s_add_u32 s{sPd}, s{sPd}, {W1}
    s_mov_b32 s{sPds}, 7168
    s_lshl_b32 s{sCorr}, s32, 10
    s_add_u32 s{sCorr}, s{sCorr}, {C1}
    s_branch {join}
    {l2}:
    s_mov_b32 s{SP}, s50
    s_mov_b32 s{SP+1}, s51
    s_cmp_ge_u32 s32, 224
    s_cselect_b32 s{sPsz}, 0, {3584*2048}
    s_cselect_b32 s{sDsz}, 0, s{sDsz}
    s_mov_b32 s{sPss}, 2048
    s_sub_u32 s35, s32, 112
    s_lshl_b32 s35, s35, 2
    s_add_u32 s35, s35, s{sWV}
    s_mul_i32 s32, s35, 4682
    s_lshr_b32 s32, s32, 16
    s_mul_i32 s34, s32, 14
    s_sub_u32 s34, s35, s34
    s_lshl_b32 s34, s34, 4
    s_lshr_b32 s{sPd}, s32, 1
    s_mul_i32 s{sPd}, s{sPd}, {224*2}
    s_and_b32 s35, s32, 1
    s_add_u32 s{sPd}, s{sPd}, s35
    s_lshl_b32 s{sPd}, s{sPd}, 10
    s_add_u32 s{sPd}, s{sPd}, {W2}
    s_mov_b32 s{sPds}, 2048
    {join}:
    s_mov_b32 s{SP+2}, 0
    s_mov_b32 s{SP+3}, 0x20000
    v_lshrrev_b32 v{vPk}, 2, v{vLane}
    v_mul_lo_u32 v{vPk}, v{vPk}, s{sPss}
    v_and_b32 v5, 3, v{vLane}
    v_lshl_add_u32 v{vPk}, v5, 4, v{vPk}
    s_lshl_b32 s{sPss}, s{sPss}, 4
    s_mul_i32 s{sPs}, s34, s{sPss}
    s_lshl_b32 s32, s32, 6
    s_add_u32 s{sPs}, s{sPs}, s32
    s_mul_i32 s34, s34, s{sPds}
    s_add_u32 s{sPd}, s{sPd}, s34
    s_lshl_b32 s{sSp2}, s2, 2
    s_add_u32 s{sSp2}, s{sSp2}, {WPF}
    s_cmp_eq_u32 s{sWV}, 0
    s_cselect_b32 s{sSp2}, s{sSp2}, {OOB}
    """)
    srd(k, SD, "s4", "s5", f"s{sDsz}")
    k(f"v_lshlrev_b32 v{vTch}, {6 if CFG.get('t64', 1) else 7}, v{vLane}")
    k(f"s_and_b32 s{sXS}, s{sMT}, 1")
    k(f"s_lshl_b32 s{sXS}, s{sXS}, 2")
    k(f"s_add_u32 s{sXS}, s{sXS}, s{sWV}")
    tr_addr(k, vTr, 5)
    k(f"s_lshl_b32 s32, s{sWV}, 12")
    k(f"v_add_u32 v{vTr}, s32, v{vTr}")

    layer = k.label("layer")
    k(f"{layer}:")
    stamp(k)
    acc, kva, wf, vst, bc = 8, 40, 56, 88, 104
    vmean, vrs = 5, 6
    AB = 16
    aKA = 64
    stats_issue(k, STIN, vst, 7)
    nokv, kvV, kvj, qgo = k.label("nokv"), k.label("kvV"), k.label("kvj"), k.label("qgo")
    late = resident_w_pieces()[NPRE:]
    NL = len(late)
    def own_act():
        for p in late: emit_items(k, p)
        k(f"s_lshl_b32 s{sAo}, s{sTB}, 16")
        if XIN: k(f"s_add_u32 s{sAo}, s{sAo}, {XIN}")
        for t in range(AB): act_ld(k, 4 * t, t)
    k(f"s_cmp_eq_u32 s{sKVr}, 0")
    k(f"s_cbranch_scc1 {nokv}")
    k(f"""
    s_lshl_b32 s{sAo}, s{sTBs}, 16
    s_lshl_b32 s33, s{sWV}, 14
    s_add_u32 s{sAo}, s{sAo}, s33
    """)
    for t in range(16): act_ld(k, aKA + 4 * t, t)
    NE = CFG.get("ne", 8)
    for p in late[:NE]: emit_items(k, p)
    k(f"s_waitcnt vmcnt({16+NE})")
    stats_finish(k, vst, vmean, vrs)
    split3_pack(k, vmean, vst, vst + 1, bc, "B")
    k(f"s_lshl_b32 s33, s{sWV}, 12")
    k(f"s_add_u32 s33, s33, 0x20000")
    k(f"v_add_u32 v7, s33, v{vL0}")
    k(f"s_cmp_eq_u32 s{sKVr}, 2")
    k(f"s_cbranch_scc1 {kvV}")
    for role in "KV":
        if role == "V": k(f"{kvV}:")
        for i in range(16):
            if i % 4 == 0: k(f"s_waitcnt vmcnt({NE + 12 - i})")
            w_, a_ = ar(aWKV + 4 * i, 4), ar(aKA + 4 * i, 4)
            A_, B_ = (w_, a_) if role == "K" else (a_, w_)
            k(f"v_mfma_f32_32x32x16_bf16 {vr(kva,16)}, {A_}, {B_}, {vr(kva,16) if i else '0'}")
        k.nop(12)
        for q in range(4): k(f"ds_write_b128 v7, {vr(kva+4*q,4)} offset:{1024*q}")
        k("s_waitcnt lgkmcnt(0)")
        k("s_barrier")
        k(f"s_cmp_lg_u32 s{sTBs}, s{sTB}")
        k(f"s_cbranch_scc1 {kvj}")
        k(f"v_add_u32 v7, 0x20000, v{vL0}")
        A_, B_ = (ar(aCQ + 8, 4), vr(bc, 4)) if role == "K" else (vr(bc, 4), ar(aCQ + 8, 4))
        k(f"v_mfma_f32_32x32x16_bf16 {vr(kva,16)}, {A_}, {B_}, 0")
        T = 108
        for w in range(4):
            for q in range(4): k(f"ds_read_b128 {vr(T+16*w+4*q,4)}, v7 offset:{4096*w+1024*q}")
            if w == 1: k("s_waitcnt lgkmcnt(4)")
        if role == "V":
            k(f"""
            v_and_b32 v{vst}, 31, v{vLane}
            v_lshlrev_b32 v{vst}, 2, v{vst}
            v_add_u32 v{vst}, 0x24000, v{vst}
            ds_write_b32 v{vst}, v{vrs}
            v_lshrrev_b32 v{vst+1}, 5, v{vLane}
            v_lshlrev_b32 v{vst+1}, 4, v{vst+1}
            v_add_u32 v{vst+1}, 0x24000, v{vst+1}
            s_waitcnt lgkmcnt(0)
            """)
            for g in range(4): k(f"ds_read_b128 {vr(wf+4*g,4)}, v{vst+1} offset:{32*g}")
        k(f"s_lshl_b32 s35, s{sTB}, 12")
        k(f"s_add_u32 s35, s35, {KV + (0 if role == 'K' else 2048)}")
        k("s_waitcnt lgkmcnt(0)")
        for w in range(4):
            for i in range(8): k(f"v_pk_add_f32 {vr(kva+2*i,2)}, {vr(kva+2*i,2)}, {vr(T+16*w+2*i,2)}")
        for i in range(16): k(f"v_mul_f32 v{kva+i}, v{kva+i}, v{vrs if role == 'K' else wf+i}")
        for i in range(8): k(f"v_cvt_pk_bf16_f32 v{T+i}, v{kva+2*i}, v{kva+2*i+1}")
        for half in range(2):
            k(f"buffer_store_dwordx4 {vr(T+4*half,4)}, v{vL0}, {S4(SR)}, s35 offen offset:{1024*half} sc1")
        if role == "K": k(f"s_branch {kvj}")
    k(f"{kvj}:")
    late_all = late
    late = late_all[NE:]
    own_act()
    k(f"s_branch {qgo}")
    k(f"{nokv}:")
    late = late_all
    own_act()
    k(f"s_waitcnt vmcnt({AB+NL})")
    stats_finish(k, vst, vmean, vrs)
    split3_pack(k, vmean, vst, vst + 1, bc, "B")
    k(f"{qgo}:")
    k(f"s_waitcnt vmcnt({AB})")
    k("s_mov_b64 exec, 1")
    k(f"buffer_store_dword v{vOne}, off, {S4(SR)}, s{sKVf} sc1")
    k("s_mov_b64 exec, -1")
    k("s_barrier")
    resident_loop(k, acc, wf, 0, AB)
    Qr, CI, S0, Pr, Or, Lr = 112, 128, 160, 192, 200, 232
    KBUF, VBUF, PKT = 56, 72, 88
    vcur, vnxt, vcs = 104, 105, 106
    aCS, aALL = 0, 16
    kvload = f"buffer_load_dwordx2 v[240:241], v7, {S4(SR)}, s35 offen sc1"
    k(f"v_lshlrev_b32 v7, 3, v{vLane}")
    k(f"s_mov_b32 s35, {KVF}")
    k(kvload)
    for nb in range(2):
        a = acc + 16 * nb
        k(f"v_mfma_f32_32x32x16_bf16 {vr(a,16)}, {ar(aCQ+4*nb,4)}, {vr(bc,4)}, {vr(a,16)}")
    k(f"v_mul_f32 v{vrs}, {f32(QS)}, v{vrs}")
    for i in range(32): k(f"v_mov_b32 v{Or+i}, 0")
    for i in range(8): k(f"v_mov_b32 v{Lr+i}, 0")
    for i in range(8): k(f"v_mov_b32 v{Pr+i}, 0")
    for i in range(32): k(f"v_mul_f32 v{acc+i}, v{acc+i}, v{vrs}")
    for i in range(16): k(f"v_cvt_pk_bf16_f32 v{Qr+i}, v{acc+2*i}, v{acc+2*i+1}")
    k("s_barrier")
    stamp(k)
    k(f"s_add_u32 s{SW}, s{SR}, {KV}")
    k(f"s_addc_u32 s{SW+1}, s{SR+1}, 0")
    k(f"s_mov_b32 s{SW+2}, {256*KB}")
    k(f"s_mov_b32 s{SW+3}, 0x20000")
    k(f"""
    s_lshl_b32 s{sWo}, s{sWV}, 13
    s_add_u32 s{sDst}, s{sWo}, 0x10000
    s_add_u32 s{sLw}, s{sWo}, 0x28000
    s_mov_b32 s{sCur}, 0x10000
    s_mov_b32 s{sNxt}, 0x18000
    s_mov_b32 s{SP+2}, s{sPsz}
    """)
    spin_check(k, kvload, [240, 241], 0, cold)
    stamp(k)
    def kv_piece(p):
        pre, post = [], []
        if p % 4 == 0:
            pre = [f"s_add_u32 m0, s{sDst}, {1024*p}"]
        if p == 3: post = [f"s_add_u32 s{sWo}, s{sWo}, 4096"]
        if p == 4: post = [f"s_add_u32 s{sDst}, s{sDst}, 0x8000"]
        if p == 5: post = [f"s_sub_u32 s{sG1}, s{sDst}, 0x18000"]
        if p == 6: pre = [f"s_cmp_ge_u32 s{sDst}, s{sLw}"]; post = [f"s_cselect_b32 s{sDst}, s{sG1}, s{sDst}"]
        if p == 7: post = [f"s_add_u32 s{sWo}, s{sWo}, {0x8000-4096}"]
        return pre, f"buffer_load_dwordx4 v{vL0}, {S4(SW)}, s{sWo} offen offset:{1024*(p%4)} sc1 lds", post
    def kv_emit(p):
        pre, d, post = kv_piece(p)
        for x in pre: k(x)
        if pre: k("s_nop 0")
        k(d)
        for x in post: k(x)
    def pack_piece(i):
        return [f"s_add_u32 m0, s87, {1024*i}"], f"buffer_load_dwordx4 v{vPk}, {S4(SP)}, s{sPs} offen nt lds", [f"s_add_u32 s{sPs}, s{sPs}, s{sPss}"]
    k(f"s_lshl_b32 s87, s{sWV}, 12")
    for p in range(8): kv_emit(p)
    for i in range(4):
        pre, d, post = pack_piece(i)
        k(pre[0]); k("s_nop 0"); k(d); k(post[0])
    kv_emit(0); kv_emit(1)
    k(f"v_mov_b32 v7, 0x3f803f80")
    for i in range(16): k(f"v_accvgpr_write_b32 a{aCS+i}, 0")
    for i in range(4): k(f"v_accvgpr_write_b32 a{aALL+i}, v7")
    for i in range(8): k(f"v_mov_b32 v{VBUF+8+i}, 0")
    k(f"""
    v_add_u32 v{vcur}, s{sCur}, v{vL0}
    v_add_u32 v{vnxt}, s{sNxt}, v{vL0}
    v_and_b32 v{vcs}, 31, v{vLane}
    v_lshlrev_b32 v{vcs}, 2, v{vcs}
    s_lshl_b32 s33, s{sWV}, 7
    s_add_u32 s33, s33, 0x4000
    v_add_u32 v{vcs}, s33, v{vcs}
    s_waitcnt vmcnt(6)
    s_barrier
    """)
    for f in range(2): k(f"ds_read_b128 {vr(KBUF+4*f,4)}, v{vcur} offset:{1024*f}")
    for f in range(2): k(f"ds_read_b128 {vr(VBUF+4*f,4)}, v{vcur} offset:{2048+1024*f}")
    k("s_waitcnt lgkmcnt(2)")
    for qt in range(2):
        sx = S0 + 16 * qt
        k(f"v_mfma_f32_32x32x16_bf16 {vr(sx,16)}, {vr(KBUF,4)}, {vr(Qr+8*qt,4)}, 0")
        k(f"v_mfma_f32_32x32x16_bf16 {vr(sx,16)}, {vr(KBUF+4,4)}, {vr(Qr+8*qt+4,4)}, {vr(sx,16)}")
    k.nop(10)
    def tile_max(kk, dst, src, tmp):
        kk(f"v_max3_f32 v{dst}, v{src}, v{src+1}, v{src+2}")
        for i in range(3, 15, 2): kk(f"v_max3_f32 v{dst}, v{dst}, v{src+i}, v{src+i+1}")
        kk(f"v_max_f32 v{dst}, v{dst}, v{src+15}")
        kk(f"v_mov_b32 v{tmp}, v{dst}")
        kk.nop(2)
        kk(f"v_permlane32_swap_b32 v{dst}, v{tmp}")
        kk.nop(1)
        kk(f"v_max_f32 v{dst}, v{dst}, v{tmp}")
    for qt in range(2):
        tile_max(k, 6, S0 + 16 * qt, 7)
        for i in range(16): k(f"v_sub_f32 v{CI+16*qt+i}, 0, v6")
        if qt == 0:
            for i in range(16): k(f"v_sub_f32 v{S0+i}, v{S0+i}, v6")
    k("s_waitcnt lgkmcnt(0)")
    def body(pack):
        for v in range(16):
            t, qt = v // 2, v % 2
            c, n = S0 + 16 * qt, S0 + 16 * (1 - qt)
            e = lambda i: k(f"v_exp_f32 v{c+i}, v{c+i}")
            cv = lambda i: k(f"v_cvt_pk_bf16_f32 v{Pr+i}, v{c+2*i}, v{c+2*i+1}")
            oq, tn, tp = 1 - qt, t + qt, t - 1 + qt
            Kn, Vc, Vp = KBUF + 8 * (tn % 2), VBUF + 8 * (t % 2), VBUF + 8 * (tp % 2)
            base = vcur if t + 1 < 8 else vnxt
            dst = (KBUF if qt == 0 else VBUF) + 8 * ((t + 1) % 2)
            rd = [f"ds_read_b128 {vr(dst+4*j,4)}, v{base} offset:{((t+1) % 8)*4096 + 2048*qt + 1024*j}" for j in range(2)]
            sl = [[] for _ in range(6)]
            tail = []
            if v == 14:
                sl[0].append("s_barrier"); sl[1].append(rd[0]); sl[2].append(rd[1])
            else:
                sl[0].append(rd[0]); sl[1].append(rd[1])
            vm = None
            if v >= 14 or v < 6: vm = kv_piece((v + 2) % 16)
            if pack and 10 <= v < 14: vm = pack_piece(v - 10)
            if vm:
                sl[2] += vm[0]; sl[3].append(vm[1]); sl[4] += vm[2]
            if v == 13: sl[4].append(f"s_waitcnt vmcnt({8 if pack else 0})")
            if v == 8: sl[2] += [f"s_mov_b32 s{sCur}, s{sNxt}"] if False else []
            if pack:
                tr = lambda i: [f"ds_read_b64_tr_b16 {vr(PKT+4*i,2)}, v{vTr} offset:{1024*i}", f"ds_read_b64_tr_b16 {vr(PKT+4*i+2,2)}, v{vTr} offset:{1024*i+512}"]
                st = lambda i: [f"buffer_store_dwordx4 {vr(PKT+4*i,4)}, v{vL0}, {S4(SD)}, s{sPd} offen sc1", f"s_add_u32 s{sPd}, s{sPd}, s{sPds}"]
                cs = lambda i: f"v_mfma_f32_32x32x16_bf16 {ar(aCS,16)}, {ar(aALL,4)}, {vr(PKT+4*i,4)}, {ar(aCS,16)}"
                if v == 6:
                    sl[1].append("s_waitcnt vmcnt(8)"); sl[2] += tr(0); sl[3] += tr(1)
                if v == 7:
                    sl[2] += tr(2); sl[3] += tr(3); sl[4] += st(0); tail.append(cs(0))
                if v == 8:
                    sl[3] += st(1); tail.append(cs(1)); sl[2].append(f"s_cmp_gt_u32 s{sCt}, 5"); sl[4].append(f"s_cselect_b32 s{SP+2}, s{sPsz}, 0")
                    sl[3] = [st(1)[0]]; sl[5].append(st(1)[1])
                if v == 9:
                    sl[2] += st(2); sl[4] += st(3); tail.append(cs(2))
                if v == 10: tail.append(cs(3))
                if v == 12: sl[1].append(f"ds_write_b32 v{vcs}, a{aCS}")
            sl[5].insert(0, "s_waitcnt lgkmcnt(0)")
            def M(txt, i):
                k(txt)
                for x in sl[i]: k(x)
            e(0); e(1); e(2)
            M(f"v_mfma_f32_32x32x16_bf16 {vr(Or+16*oq,16)}, {vr(Vp+4,4)}, {vr(Pr+4,4)}, {vr(Or+16*oq,16)}", 0)
            e(3); e(4); e(5)
            M(f"v_mfma_f32_16x16x32_bf16 {vr(Lr+4*oq,4)}, {ar(aON,4)}, {vr(Pr+4,4)}, {vr(Lr+4*oq,4)}", 1)
            e(6); e(7); cv(0); cv(1)
            M(f"v_mfma_f32_32x32x16_bf16 {vr(n,16)}, {vr(Kn,4)}, {vr(Qr+8*oq,4)}, {vr(CI+16*oq,16)}", 2)
            cv(2); cv(3); e(8); e(9); e(10)
            M(f"v_mfma_f32_32x32x16_bf16 {vr(n,16)}, {vr(Kn+4,4)}, {vr(Qr+8*oq+4,4)}, {vr(n,16)}", 3)
            e(11); e(12); e(13)
            M(f"v_mfma_f32_32x32x16_bf16 {vr(Or+16*qt,16)}, {vr(Vc,4)}, {vr(Pr,4)}, {vr(Or+16*qt,16)}", 4)
            e(14); e(15); cv(4); cv(5)
            M(f"v_mfma_f32_16x16x32_bf16 {vr(Lr+4*qt,4)}, {ar(aON,4)}, {vr(Pr,4)}, {vr(Lr+4*qt,4)}", 5)
            cv(6); cv(7)
            for x in tail: k(x)
        k(f"""
        s_add_u32 s{sNxt}, s{sNxt}, 0x8000
        s_cmp_ge_u32 s{sNxt}, 0x28000
        s_cselect_b32 s{sNxt}, 0x10000, s{sNxt}
        v_mov_b32 v{vcur}, v{vnxt}
        v_add_u32 v{vnxt}, s{sNxt}, v{vL0}
        s_sub_u32 s{sCt}, s{sCt}, 1
        """)
    lpP, lpN, spec, bk, nsp1 = k.label("aP"), k.label("aN"), k.label("spec"), k.label("bk"), k.label("nsp1")
    stamp(k)
    k(f"s_mov_b32 s{sCt}, 8")
    k(f"s_cmp_lg_u32 s{sLY}, 0")
    k(f"s_cbranch_scc1 {lpN}")
    k(f"{lpP}:")
    body(True)
    k(f"s_cmp_gt_u32 s{sCt}, 4")
    k(f"s_cbranch_scc1 {lpP}")
    k(f"s_cmp_lg_u32 s{sWV}, 0")
    k(f"s_cbranch_scc1 {lpN}")
    k(f"v_and_b32 v240, 31, v{vLane}")
    k(f"v_lshlrev_b32 v240, 2, v240")
    for i in range(4): k(f"ds_read_b32 v{244+i}, v240 offset:{0x4000 + 128*i}")
    k("s_waitcnt lgkmcnt(0)")
    for i in range(1, 4): k(f"v_add_f32 v244, v244, v{244+i}")
    k(f"v_cmp_gt_u32 vcc, 32, v{vLane}")
    k.nop(2)
    k("v_cndmask_b32 v244, 0, v244, vcc")
    split3_pack(k, 244, 245, 246, 240, "A")
    k(f"buffer_store_dwordx4 v[240:243], v{vL0}, {S4(SG)}, s{sCorr} offen sc1")
    for _ in range(CFG.get("apad", 0)): k("s_nop 0")
    k(f"{lpN}:")
    body(False)
    k(f"s_cmp_eq_u32 s{sCt}, 3")
    k(f"s_cbranch_scc1 {spec}")
    k(f"s_cmp_lg_u32 s{sCt}, 0")
    k(f"s_cbranch_scc1 {lpN}")
    cold(f"{spec}:")
    cold("s_mov_b64 exec, 1")
    cold(f"buffer_store_dword v{vOne}, off, {S4(SG)}, s{sSp2} sc1")
    cold("s_mov_b64 exec, -1")
    if CFG.get("two", 1): touch(cold, WO, 128 * KB, 128 * KB)
    if CFG.get("tw1", 64): touch(cold, W1, 448 * KB, CFG.get("tw1", 64) * KB, only_layer=1)
    cold(f"s_branch {lpN}")
    stamp(k)
    k(f"v_mfma_f32_32x32x16_bf16 {vr(Or+16,16)}, {vr(VBUF+8+4,4)}, {vr(Pr+4,4)}, {vr(Or+16,16)}")
    k(f"v_mfma_f32_16x16x32_bf16 {vr(Lr+4,4)}, {ar(aON,4)}, {vr(Pr+4,4)}, {vr(Lr+4,4)}")
    xl = f"buffer_load_dword v240, v7, {S4(SG)}, s34 offen sc1"
    wl = f"buffer_load_dwordx4 v[244:247], v{vL0}, {S4(SG)}, s35 offen sc1"
    k(f"""
    v_and_b32 v7, 15, v{vLane}
    v_lshlrev_b32 v7, 2, v7
    s_lshl_b32 s34, s{sMT}, 7
    s_add_u32 s34, s34, {XCC}
    s_mov_b32 s35, {WPF}
    s_mov_b32 s{sPsz}, 0
    s_mov_b32 s{sSp2}, {OOB}
    s_waitcnt vmcnt(0) lgkmcnt(0)
    """)
    k(xl); k(wl)
    k("s_barrier")
    fin, slow = k.label("fin"), k.label("slow")
    k(f"v_add_f32 v6, v{Lr}, v{Lr+4}")
    for i in range(32): k(f"v_fma_f32 v6, 0, v{Or+i}, v6")
    k(f"""
    v_mov_b32 v5, {f32(2.0**100)}
    v_cmp_nle_f32 vcc, v6, v5
    s_cmp_lg_u64 vcc, 0
    s_cbranch_scc1 {slow}
    {fin}:
    v_rcp_f32 v5, v{Lr}
    v_rcp_f32 v6, v{Lr+4}
    s_lshl_b32 s85, s{sTB}, 16
    s_lshl_b32 s33, s{sNT}, 12
    s_add_u32 s85, s85, s33
    s_add_u32 s85, s85, {OF}
    """)
    for i in range(32): k(f"v_mul_f32 v{Or+i}, v{Or+i}, v{5 + i//16}")
    for i in range(16): k(f"v_cvt_pk_bf16_f32 v{S0+i}, v{Or+2*i}, v{Or+2*i+1}")
    for q in range(4): k(f"buffer_store_dwordx4 {vr(S0+4*q,4)}, v{vL0}, {S4(SR)}, s85 offen offset:{1024*q}")
    spin_check(k, xl, [240], 5, cold)
    k(f"v_cmp_ne_u32 vcc, s{sXCC}, v240")
    k(f"s_cmp_lg_u64 vcc, 0")
    k(f"s_cselect_b32 s{sMODE}, 1, {1 if FORCE_SAFE else 0}")
    spin_check(k, wl, [244, 245, 246, 247], 4, cold)
    c = cold
    c(f"{slow}:")
    vm, va = 240, 242
    c("s_waitcnt vmcnt(0)")
    for i in range(4): c(f"v_mov_b32 v{8+i}, v{244+i}")
    c("v_mov_b32 v12, v240")
    for i in range(32): c(f"v_mov_b32 v{Or+i}, 0")
    for i in range(8): c(f"v_mov_b32 v{Lr+i}, 0")
    c(f"v_mov_b32 v{vm}, 0xff800000")
    c(f"v_mov_b32 v{vm+1}, 0xff800000")
    c(f"s_mov_b32 s{sWo}, 0")
    sl = k.label("sloop")
    c(f"{sl}:")
    for f in range(4):
        d = KBUF + 4 * f if f < 2 else VBUF + 4 * (f - 2)
        c(f"buffer_load_dwordx4 {vr(d,4)}, v{vL0}, {S4(SW)}, s{sWo} offen offset:{1024*f} sc1")
    c("s_waitcnt vmcnt(0)")
    for qt in range(2):
        O_, L_ = Or + 16 * qt, Lr + 4 * qt
        c(f"v_mfma_f32_32x32x16_bf16 {vr(S0,16)}, {vr(KBUF,4)}, {vr(Qr+8*qt,4)}, 0")
        c(f"v_mfma_f32_32x32x16_bf16 {vr(S0,16)}, {vr(KBUF+4,4)}, {vr(Qr+8*qt+4,4)}, {vr(S0,16)}")
        c.nop(12)
        tile_max(c, 6, S0, 5)
        c(f"""
        v_max_f32 v6, v6, v{vm+qt}
        v_sub_f32 v{va}, v{vm+qt}, v6
        v_exp_f32 v{va}, v{va}
        v_mov_b32 v{vm+qt}, v6
        """)
        for i in range(16): c(f"v_sub_f32 v{S0+i}, v{S0+i}, v6")
        for i in range(16): c(f"v_exp_f32 v{S0+i}, v{S0+i}")
        for i in range(16): c(f"v_mul_f32 v{O_+i}, v{O_+i}, v{va}")
        for i in range(4): c(f"v_mul_f32 v{L_+i}, v{L_+i}, v{va}")
        for i in range(8): c(f"v_cvt_pk_bf16_f32 v{Pr+i}, v{S0+2*i}, v{S0+2*i+1}")
        c.nop(2)
        for f in range(2):
            c(f"v_mfma_f32_32x32x16_bf16 {vr(O_,16)}, {vr(VBUF+4*f,4)}, {vr(Pr+4*f,4)}, {vr(O_,16)}")
            c(f"v_mfma_f32_16x16x32_bf16 {vr(L_,4)}, {ar(aON,4)}, {vr(Pr+4*f,4)}, {vr(L_,4)}")
        c.nop(12)
    c(f"""
    s_add_u32 s{sWo}, s{sWo}, 4096
    s_cmp_lt_u32 s{sWo}, {256*KB}
    s_cbranch_scc1 {sl}
    """)
    for i in range(4): c(f"v_mov_b32 v{244+i}, v{8+i}")
    c("v_mov_b32 v240, v12")
    c(f"s_branch {fin}")
    resident_setup(k, WO)
    handoff(k, cold, resident_w_pieces(), CFG["n1"], CFG.get("wo_n2", 20), F_O, F_O, vPoll, 240)
    acc, wf, pk = 8, 40, 72
    k(f"s_lshl_b32 s{sAo}, s{sTB}, 16")
    k(f"s_add_u32 s{sAo}, s{sAo}, {OF}")
    for t in range(AB): act_ld(k, 4 * t, t)
    k(f"s_waitcnt vmcnt({AB})")
    k("s_barrier")
    resident_loop(k, acc, wf, 0, AB)
    residual(k, acc)
    k("s_barrier")
    x_epilogue(k, acc, pk, XMID, STMID)
    acc, wf, vst, bc, tmp = 8, 120, 152, 168, 172
    r1 = Ring(7, 4, 4, 16, CFG.get("f1_AB", 8), 7, acc, wf, 0)
    aC1 = 64
    r1.setup_w(k, W1, 64)
    cp = [[("txt", f"s_mul_i32 s34, s{sNT}, {7*KB}"), ("txt", f"s_add_u32 s34, s34, {C1}")]]
    for nb in range(7):
        o = []
        if nb == 4: o.append(("txt", "s_add_u32 s34, s34, 4096"))
        o.append(("vm", ("X", nb), f"buffer_load_dwordx4 {ar(aC1+4*nb,4)}, v{vL0}, {S4(SG)}, s34 offen offset:{1024*(nb%4)}"))
        cp.append(o)
    handoff(k, cold, r1.wpro + cp, CFG["n1"], CFG["f1_n2"], F_XMID, F_XMID, vPoll, 240)
    stats_issue(k, STMID, vst, 7)
    k(f"s_lshl_b32 s33, s{sTB}, 16")
    k(f"s_add_u32 s33, s33, {XMID}")
    srd_off(k, SA, SR, "s33", 64 * KB)
    k(f"s_mov_b32 s{sAo}, 0")
    def pro1(k, n):
        for i in range(112): k(f"v_mov_b32 v{acc+i}, 0")
        k(f"s_waitcnt vmcnt({n})")
        stats_finish(k, vst, vmean, vrs)
        k(f"v_mul_f32 v{vrs}, {f32(-LOG2E)}, v{vrs}")
        k(f"v_mov_b32 v{vrs+1}, v{vrs}")
        split3_pack(k, vmean, vst, vst + 1, bc, "B")
    r1.main(k, pro1)
    for nb in range(7):
        a = acc + 16 * nb
        k(f"v_mfma_f32_32x32x16_bf16 {vr(a,16)}, {ar(aC1+4*nb,4)}, {vr(bc,4)}, {vr(a,16)}")
    k("s_waitcnt vmcnt(0) lgkmcnt(0)")
    k("s_barrier")
    r2 = Ring(2, 8, CFG["f2_R"], 28, CFG["f2_AB"], 7, 8, 40, 0)
    r2.setup_w(k, W2, 224)
    k(f"""
    s_mul_i32 s35, s{sTB}, {224*KB}
    s_mul_i32 s33, s{sNT}, {14*KB}
    s_add_u32 s35, s35, s33
    s_add_u32 s35, s35, {HF}
    """)
    e = tmp
    w2p = list(r2.wpro)
    per = (len(w2p) + 4) // 5
    for nb in range(7):
        a = acc + 16 * nb
        p = tmp + 16 + 8 * (nb % 2)
        for pc in w2p[nb * per:(nb + 1) * per]: emit_items(k, pc)
        for i in range(8): k(f"v_pk_mul_f32 {vr(a+2*i,2)}, {vr(a+2*i,2)}, {vr(vrs,2)}")
        for i in range(16): k(f"v_exp_f32 v{e+i}, v{a+i}")
        for i in range(8): k(f"v_pk_fma_f32 {vr(e+2*i,2)}, {vr(e+2*i,2)}, s[{sL2E}:{sL2E+1}], s[{sL2E}:{sL2E+1}]")
        for i in range(16): k(f"v_rcp_f32 v{e+i}, v{e+i}")
        for i in range(8): k(f"v_pk_mul_f32 {vr(a+2*i,2)}, {vr(a+2*i,2)}, {vr(e+2*i,2)}")
        for i in range(8): k(f"v_cvt_pk_bf16_f32 v{p+i}, v{a+2*i}, v{a+2*i+1}")
        for half in range(2):
            k(f"buffer_store_dwordx4 {vr(p+4*half,4)}, v{vL0}, {S4(SR)}, s35 offen offset:{((2*nb+half)%4)*1024}")
        if nb % 2 == 1: k("s_add_u32 s35, s35, 4096")
    handoff(k, cold, [], 0, 0, F_H, F_H, vPoll, 240)
    acc, pk = 8, 72
    k(f"s_mul_i32 s33, s{sTB}, {224*KB}")
    k(f"s_add_u32 s33, s33, {HF}")
    srd_off(k, SA, SR, "s33", 224 * KB)
    k(f"s_mov_b32 s{sAo}, 0")
    def pro2(k, n):
        for i in range(32): k(f"v_mov_b32 v{acc+i}, 0")
    def spec2(c):
        touch(c, WQ, 128 * KB, 128 * KB, only_layer=0)
        touch(c, WKV, 0, 128 * KB, only_layer=0)
    r2.main(k, pro2, cold, (1, spec2) if CFG.get("twq", 1) else None)
    residual(k, acc)
    final = k.label("final")
    k(f"s_cmp_lg_u32 s{sLY}, 0")
    k(f"s_cbranch_scc1 {final}")
    k("s_waitcnt vmcnt(0) lgkmcnt(0)")
    k("s_barrier")
    x_epilogue(k, acc, pk, RS + XIN, RS + STIN)
    resident_setup(k, WQ)
    handoff(k, cold, phaseA_pieces(), CFG["n1"], CFG.get("a_n2", 24), RS + F_XIN, RS + F_XIN, vPollA, 240)
    k(f"""
    s_add_u32 s{SR}, s{SR}, {RS}
    s_addc_u32 s{SR+1}, s{SR+1}, 0
    s_mov_b32 s{sLY}, 1
    s_branch {layer}
    {final}:
    """)
    srd(k, SA, "s6", "s7", 2048 * 2048)
    k(f"""
    v_and_b32 v5, 31, v{vLane}
    v_lshrrev_b32 v6, 5, v{vLane}
    v_lshlrev_b32 v5, 11, v5
    v_lshl_add_u32 v5, v6, 4, v5
    s_lshl_b32 s35, s{sTB}, 16
    s_lshl_b32 s33, s{sNT}, 7
    s_add_u32 s35, s35, s33
    """)
    k.nop(2)
    for i in range(16): k(f"v_cvt_pk_bf16_f32 v{pk+i}, v{acc+2*i}, v{acc+2*i+1}")
    k.nop(2)
    for q in range(4):
        b = pk + 4 * q
        k(f"v_permlane32_swap_b32 v{b}, v{b+2}")
        k(f"v_permlane32_swap_b32 v{b+1}, v{b+3}")
    for q in range(4):
        k(f"buffer_store_dwordx4 {vr(pk+4*q,4)}, v5, {S4(SA)}, s35 offen offset:{32*q}")
    if PROF:
        k("s_waitcnt vmcnt(0)")
        stamp(k)
        k("s_memrealtime s[70:71]")
        k("s_waitcnt lgkmcnt(0)")
        k("v_writelane_b32 v255, s70, 63")
        k(f"v_writelane_b32 v255, s{sMODE}, 62")
        srd(k, SA, "s4", "s5", WS_SIZE)
        k(f"""
        s_lshl_b32 s33, s2, 2
        s_add_u32 s33, s33, s{sWV}
        s_lshl_b32 s33, s33, 8
        s_add_u32 s33, s33, {PROFB}
        v_lshlrev_b32 v5, 2, v{vLane}
        buffer_store_dword v255, v5, {S4(SA)}, s33 offen
        """)
    k(f"{end}:")
    k("s_endpgm")
    k.lines += cold.lines
    return k, dict(grid=256, block=256, lds=160 * KB, vgpr=512, accum=256)

def build():
    km = gen_main()
    code_kb = 44
    kern = {}
    for k, m in (gen_prep(code_kb), km): kern[k.name] = (k, m)
    order = ["prep_kernel", "main_kernel"]
    out = ["; interleaved MQA attention + SiLU FFN, 2 layers; emitted by gen/gen2.py (own generator)"]
    for n in order:
        m = kern[n][1]
        out.append(f"; @launch kernel={n} grid=({m['grid']},1,1) block=({m['block']},1,1) lds={m['lds']}")
    out.append('.amdgcn_target "amdgcn-amd-amdhsa--gfx950"')
    out.append(".text")
    errs = []
    for n, (k, m) in kern.items():
        errs += check_hazards(k.lines, n)
        out += [f".globl {n}", ".p2align 8", f".type {n},@function", f"{n}:", k.text()]
    out.append("Lcode_end:")
    out.append(f".fill (({code_kb * 1024} - (Lcode_end - main_kernel)) / 4), 4, 0xbf800000")
    out.append('.section .rodata,"a"')
    for n, (k, m) in kern.items():
        out.append(kernel_desc(n, m["vgpr"], m["accum"]))
    return "\n".join(out) + "\n", errs

if __name__ == "__main__":
    txt, errs = build()
    for e in errs: print("HAZARD", e)
    dst = sys.argv[1] if len(sys.argv) > 1 else "k2.s"
    open(dst, "w").write(txt)
    print("wrote", dst, len(txt), "bytes;", len(errs), "hazards")
```

```python
import sys, os, struct
sys.path.insert(0, os.path.dirname(os.path.abspath(__file__)))
from asmlib import *

KB = 1024
CQ, C1, WPF, XCC, WKV, WO, WT = 0x0, 0x10000, 0x30000, 0x31000, 0x40000, 0x200000, 0x400000
TS = 0x100000
T1, T2, TQ = 0, 448 * KB, 896 * KB
GS = 0x1400000
RS = 0x2800000
XIN, OF, XMID, KV, STIN, STMID, FLG, HF, EX = 0x0, 0x400000, 0x800000, 0xC00000, 0xC40000, 0xC80000, 0xCC0000, 0x1000000, 0x1E00000
F_XIN, F_O, F_XMID, F_H, F_E = [FLG + 8192 * i for i in range(5)]
KVF = FLG + 40960
FLG_KB = 44
WS_SIZE = 0x10000000
OOB = 0x7ff00000
A_X, A_WQ, A_WK, A_WV, A_WO, A_BX, A_W1, A_W2, A_OUT, A_DBG, A_WS = [8 * i for i in range(11)]
LOG2E = 1.4426950408889634
def f32(x): return "0x%08x" % struct.unpack("<I", struct.pack("<f", x))[0]
PROF = os.environ.get("PROF") == "1"
FORCE_SAFE = os.environ.get("SAFE") == "1"
PROFB = 0x8000000
SPIN = 1 << 18

CFG = dict(n1=8, f1_n2=14, f2_AB=14)
for kv in os.environ.get("CFG", "").split(","):
    if "=" in kv:
        a, b = kv.split("="); CFG[a] = int(b)

LD = " sc1" if CFG.get("ldsc1", 0) else ""
sWS, sOUT = 4, 6
SA, SW, SR, SG, SP, SD = 8, 12, 16, 20, 24, 36
sAo, sWo, sLw, sCt = 28, 29, 30, 31
sMT, sNT, sWV, sTB, sLY, sMODE, sSEL = 52, 53, 54, 55, 56, 57, 58
sG1 = 60
sPs, sPss, sPd, sPds, sCorr, sSp1, sSp2, sPsz, sDsz = 61, 62, 63, 64, 65, 66, 67, 74, 75
sL2E = 68
sKVr, sKVf = 76, 77
sCur, sNxt, sDst, sXCC = 78, 79, 80, 81
sTBs = 82
vLane, vL0, vL1, vPoll, vPollA, vOne = 2, 3, 4, 250, 251, 252
vPk, vTr = 253, 254
vTch, vDum = 249, 248
vPollH, vPollE = 1, 0
sXS = 86

sTch = 92
def touch_set(k, base, tile_bytes, nbytes, i):
    per = nbytes // 8
    k(f"s_mul_i32 s{sTch}, s{sNT}, {tile_bytes}")
    k(f"s_mul_i32 s32, s{sXS}, {per}")
    k(f"s_add_u32 s{sTch}, s{sTch}, s32")
    k(f"s_add_u32 s{sTch}, s{sTch}, {base + i * 8192}")
sT2, vT2 = 93, 107
def wtouch(k, off, nbytes):
    per = nbytes // 8
    k(f"s_lshl_b32 s33, s{sNT}, 20")
    k(f"s_mul_i32 s32, s{sXS}, {per}")
    k(f"s_add_u32 s33, s33, s32")
    k(f"s_add_u32 s33, s33, {WT + off}")
    for i in range(per // 8192):
        if i: k("s_add_u32 s33, s33, 8192")
        k(f"buffer_load_dword v{vDum}, v{vTch}, {S4(SG)}, s33 offen")
    return per // 8192
def tile_off(k, d, base):
    k(f"s_lshl_b32 s{d}, s{sTB}, 16")
    k(f"s_lshl_b32 s32, s{sNT}, 12")
    k(f"s_add_u32 s{d}, s{d}, s32")
    if base: k(f"s_add_u32 s{d}, s{d}, {base}")
def stat_off(k, d, base):
    k(f"s_lshl_b32 s{d}, s{sNT}, 14")
    k(f"s_lshl_b32 s32, s{sTB}, 8")
    k(f"s_add_u32 s{d}, s{d}, s32")
    k(f"s_add_u32 s{d}, s{d}, {base}")
def htouch(k):
    k(f"s_mul_i32 s33, s{sTB}, {224*KB}")
    k(f"s_mul_i32 s32, s{sNT}, {14*KB}")
    k(f"s_add_u32 s33, s33, s32")
    k(f"s_add_u32 s33, s33, {HF}")
    k(f"buffer_load_dword v{vDum}, v{vTch}, {S4(SR)}, s33 offen sc1")
    k(f"s_add_u32 s33, s33, {6*KB}")
    k(f"buffer_load_dword v{vDum}, v{vTch}, {S4(SR)}, s33 offen sc1")
    return 2
aX, aID, aON = 228, 244, 252

S4 = lambda d: f"s[{d}:{d+3}]"
def srd(k, d, lo, hi, size):
    if lo != f"s{d}": k(f"s_mov_b32 s{d}, {lo}")
    if hi != f"s{d+1}": k(f"s_mov_b32 s{d+1}, {hi}")
    k(f"s_mov_b32 s{d+2}, {size}")
    k(f"s_mov_b32 s{d+3}, 0x20000")

def srd_off(k, d, base, off, size):
    k(f"s_add_u32 s{d}, s{base}, {off}")
    k(f"s_addc_u32 s{d+1}, s{base+1}, 0")
    k(f"s_mov_b32 s{d+2}, {size}")
    k(f"s_mov_b32 s{d+3}, 0x20000")

def stamp(k):
    if not PROF: return
    k("s_memtime s[70:71]")
    k("s_waitcnt lgkmcnt(0)")
    k("s_mov_b32 s73, m0")
    k("s_mov_b32 m0, s72")
    k("s_nop 0")
    k("v_writelane_b32 v255, s70, m0")
    k("s_mov_b32 m0, s73")
    k("s_add_u32 s72, s72, 1")

def split3_pack(k, src, t1, t2, out, side):
    k(f"""
    v_and_b32 v{t1}, 0xffff0000, v{src}
    v_sub_f32 v{t1}, v{src}, v{t1}
    v_and_b32 v{t2}, 0xffff0000, v{t1}
    v_sub_f32 v{t2}, v{t1}, v{t2}
    """)
    p1, p2, p3 = src, t1, t2
    pk = lambda d, lo, hi: k(f"v_perm_b32 v{d}, v{hi}, v{lo}, s{sSEL}")
    if side == "A":
        pk(out, p1, p2); pk(out + 1, p1, p2); pk(out + 2, p3, p1)
    else:
        pk(out, p1, p1); pk(out + 1, p2, p2); pk(out + 2, p1, p3)
    k(f"v_mov_b32 v{out+3}, 0")

def tr_addr(k, d, t):
    k(f"""
    v_lshrrev_b32 v{d}, 5, v{vLane}
    v_bfe_u32 v{t}, v{vLane}, 2, 2
    v_lshl_add_u32 v{d}, v{d}, 2, v{t}
    v_lshlrev_b32 v{d}, 6, v{d}
    v_bfe_u32 v{t}, v{vLane}, 4, 1
    v_lshl_add_u32 v{d}, v{t}, 5, v{d}
    v_and_b32 v{t}, 3, v{vLane}
    v_lshl_add_u32 v{d}, v{t}, 3, v{d}
    """)

NS, NX, NP = 40, 128, 264
def gen_prep(code_kb):
    k = K("prep_kernel")
    tot = NS + NX + NP
    end = k.label("end")
    R0 = GS
    def pst(i):
        if PROF: k(f"s_memrealtime s[{70+2*i}:{71+2*i}]")
    def pend():
        if not PROF: return
        k("s_waitcnt vmcnt(0)")
        pst(3)
        k(f"""
        s_waitcnt lgkmcnt(0)
        v_mov_b32 v8, s70
        v_mov_b32 v9, s72
        v_mov_b32 v10, s74
        v_mov_b32 v11, s76
        s_lshl_b32 s60, s2, 3
        s_add_u32 s60, s60, s26
        s_lshl_b32 s60, s60, 4
        s_add_u32 s60, s60, {PROFB + 0x100000}
        s_mov_b64 exec, 1
        buffer_store_dwordx4 v[8:11], off, s[16:19], s60
        """)
    pst(0)
    k(f"""
    s_cmp_ge_u32 s2, {tot}
    s_cbranch_scc1 {end}
    s_load_dwordx2 s[4:5], s[0:1], {A_WS}
    s_load_dwordx4 s[36:39], s[0:1], {A_X}
    s_load_dwordx4 s[40:43], s[0:1], {A_WK}
    s_load_dwordx2 s[48:49], s[0:1], {A_WO}
    v_lshrrev_b32 v1, 6, v0
    v_and_b32 v2, 63, v0
    v_readfirstlane_b32 s26, v1
    v_lshlrev_b32 v3, 4, v2
    s_mov_b32 s{sSEL}, 0x07060302
    s_mov_b32 s11, 0x20000
    s_waitcnt lgkmcnt(0)
    """)
    pst(1)
    srd(k, 16, "s4", "s5", WS_SIZE)
    lS, lP = k.label("S"), k.label("P")
    k(f"s_cmp_lt_u32 s2, {NS}")
    k(f"s_cbranch_scc1 {lS}")
    k(f"s_cmp_ge_u32 s2, {NS+NX}")
    k(f"s_cbranch_scc1 {lP}")
    k(f"""
    s_mov_b32 s8, s36
    s_mov_b32 s9, s37
    s_mov_b32 s10, {2048*2048}
    s_sub_u32 s23, s2, {NS}
    s_and_b32 s24, s23, 7
    s_lshl_b32 s24, s24, 4
    s_lshr_b32 s25, s23, 3
    s_add_u32 s24, s24, s25
    s_lshl_b32 s24, s24, 3
    s_add_u32 s24, s24, s26
    s_lshr_b32 s27, s24, 4
    s_and_b32 s25, s24, 15
    v_and_b32 v4, 31, v2
    v_lshrrev_b32 v5, 5, v2
    v_lshlrev_b32 v6, 11, v4
    v_lshl_add_u32 v6, v5, 4, v6
    s_lshl_b32 s28, s27, 16
    s_lshl_b32 s29, s25, 7
    s_add_u32 s28, s28, s29
    """)
    for q in range(4):
        k(f"buffer_load_dwordx4 v[{8+4*q}:{11+4*q}], v6, s[8:11], s28 offen offset:{32*q}")
    nc = k.label("nc")
    k(f"""
    s_lshr_b32 s44, s23, 3
    s_lshl_b32 s44, s44, 3
    s_add_u32 s44, s44, s26
    s_cmp_ge_u32 s44, {code_kb}
    s_cbranch_scc1 {nc}
    s_getpc_b64 s[46:47]
    Lpc_prep:
    s_add_u32 s46, s46, main_kernel-Lpc_prep
    s_addc_u32 s47, s47, 0
    s_lshl_b32 s44, s44, 10
    v_add_u32 v30, s44, v3
    global_load_dwordx4 v[32:35], v30, s[46:47]
    {nc}:
    v_mov_b32 v36, 0
    v_mov_b32 v37, 0
    v_mov_b32 v38, 0
    v_mov_b32 v39, 0
    s_lshl_b32 s44, s24, 10
    s_add_u32 s45, s44, {R0 + FLG}
    s_add_u32 s46, s44, {R0 + RS + FLG - FLG_KB*KB}
    s_cmp_lt_u32 s24, {FLG_KB}
    s_cselect_b32 s45, s45, s46
    s_add_u32 s46, s44, {WPF - 2*FLG_KB*KB}
    s_cmp_lt_u32 s24, {2*FLG_KB}
    s_cselect_b32 s45, s45, s46
    s_cmp_lt_u32 s24, {2*FLG_KB+8}
    s_cselect_b32 s45, s45, {OOB}
    buffer_store_dwordx4 v[36:39], v3, s[16:19], s45 offen
    v_mov_b32 v24, 0
    v_mov_b32 v25, 0
    v_mov_b32 v26, 0x3f803f80
    s_lshl_b32 s28, s27, 16
    s_lshl_b32 s29, s25, 12
    s_add_u32 s28, s28, s29
    s_add_u32 s28, s28, {R0 + XIN}
    s_lshl_b32 s30, s25, 14
    s_lshl_b32 s31, s27, 8
    s_add_u32 s30, s30, s31
    s_add_u32 s30, s30, {R0 + STIN}
    v_lshlrev_b32 v7, 3, v4
    s_waitcnt vmcnt(1)
    """)
    pst(2)
    for i in range(16):
        k(f"v_dot2_f32_bf16 v24, v{8+i}, v26, v24")
        k(f"v_dot2_f32_bf16 v25, v{8+i}, v{8+i}, v25")
    for q in range(4):
        b = 8 + 4 * q
        k(f"v_permlane32_swap_b32 v{b}, v{b+2}")
        k(f"v_permlane32_swap_b32 v{b+1}, v{b+3}")
    for q in range(4):
        k(f"buffer_store_dwordx4 v[{8+4*q}:{11+4*q}], v3, s[16:19], s28 offen offset:{1024*q}")
    k("v_mov_b32 v27, v24")
    k("v_mov_b32 v28, v25")
    k.nop(2)
    k("v_permlane32_swap_b32 v24, v27")
    k("v_permlane32_swap_b32 v25, v28")
    k.nop(1)
    k("v_add_f32 v24, v24, v27")
    k("v_add_f32 v25, v25, v28")
    k("buffer_store_dwordx2 v[24:25], v7, s[16:19], s30 offen")
    pend()
    k("s_endpgm")
    def src_voff():
        k("""
        v_lshrrev_b32 v4, 2, v2
        v_mul_lo_u32 v4, v4, s28
        v_and_b32 v5, 3, v2
        v_lshl_add_u32 v4, v5, 4, v4
        s_lshl_b32 s27, s26, 13
        """)
    k(f"{lP}:")
    pkv, pj = k.label("pkv"), k.label("pj")
    k(f"""
    s_sub_u32 s23, s2, {NS+NX}
    s_cmp_ge_u32 s23, 256
    s_cbranch_scc1 {pkv}
    s_cmp_ge_u32 s23, 128
    s_cselect_b32 s8, s48, s38
    s_cselect_b32 s9, s49, s39
    s_cselect_b32 s50, 17, 20
    s_cselect_b32 s51, {WO >> 16}, {(WT + TQ) >> 16}
    s_lshl_b32 s51, s51, 16
    s_mov_b32 s10, {1024*2048}
    s_mov_b32 s28, 2048
    s_and_b32 s23, s23, 127
    s_lshr_b32 s29, s23, 3
    s_and_b32 s30, s23, 7
    s_lshl_b32 s30, s30, 3
    s_add_u32 s30, s30, s26
    s_lshl_b32 s24, s30, 15
    s_lshl_b32 s25, s29, 7
    s_add_u32 s24, s24, s25
    s_mov_b32 s25, 64
    s_lshl_b32 s31, s29, s50
    s_add_u32 s31, s31, s51
    s_lshl_b32 s30, s30, 11
    s_add_u32 s31, s31, s30
    s_branch {pj}
    {pkv}:
    s_cmp_lt_u32 s23, 260
    s_cselect_b32 s8, s40, s42
    s_cselect_b32 s9, s41, s43
    s_mov_b32 s10, {1024*64}
    s_mov_b32 s28, 64
    s_sub_u32 s23, s23, 256
    s_lshl_b32 s31, s23, 3
    s_add_u32 s31, s31, s26
    s_lshl_b32 s31, s31, 11
    s_and_b32 s24, s31, 0xffff
    s_add_u32 s31, s31, {WKV}
    s_mov_b32 s25, 1024
    {pj}:
    """)
    src_voff()
    k(f"""
    s_mov_b32 m0, s27
    s_add_u32 s25, s24, s25
    buffer_load_dwordx4 v4, s[8:11], s24 offen lds
    s_add_u32 m0, s27, 1024
    s_nop 0
    buffer_load_dwordx4 v4, s[8:11], s25 offen lds
    """)
    tr_addr(k, 5, 6)
    k("v_add_u32 v5, s27, v5")
    k("s_waitcnt vmcnt(0)")
    pst(2)
    for i in range(2):
        k(f"ds_read_b64_tr_b16 v[{8+4*i}:{9+4*i}], v5 offset:{1024*i}")
        k(f"ds_read_b64_tr_b16 v[{10+4*i}:{11+4*i}], v5 offset:{1024*i+512}")
    k("s_waitcnt lgkmcnt(0)")
    for i in range(2):
        k(f"buffer_store_dwordx4 v[{8+4*i}:{11+4*i}], v3, s[16:19], s31 offen offset:{1024*i}")
    pend()
    k("s_endpgm")
    k(f"{lS}:")
    join, lkv = k.label("join"), k.label("kv")
    k(f"""
    s_cmp_ge_u32 s2, 34
    s_cbranch_scc1 {end}
    s_lshl_b32 s30, s26, 3
    s_cmp_ge_u32 s2, 32
    s_cbranch_scc1 {lkv}
    s_mov_b32 s8, s38
    s_mov_b32 s9, s39
    s_mov_b32 s10, {1024*2048}
    s_mov_b32 s28, 2048
    s_and_b32 s35, s2, 7
    s_lshl_b32 s35, s35, 2
    s_lshr_b32 s29, s2, 3
    s_add_u32 s29, s29, s35
    s_lshl_b32 s33, s29, 10
    s_branch {join}
    {lkv}:
    s_cmp_eq_u32 s2, 32
    s_cselect_b32 s8, s40, s42
    s_cselect_b32 s9, s41, s43
    s_lshl_b32 s33, s2, 10
    s_mov_b32 s10, {1024*64}
    s_mov_b32 s28, 64
    s_mov_b32 s29, 0
    {join}:
    """)
    assert CQ == 0
    src_voff()
    k(f"""
    s_lshl_b32 s28, s28, 4
    s_mul_i32 s24, s30, s28
    s_lshl_b32 s25, s29, 6
    s_add_u32 s24, s24, s25
    """)
    for i in range(8):
        k(f"s_add_u32 m0, s27, {1024*i}")
        k("s_nop 0")
        k(f"buffer_load_dwordx4 v4, s[8:11], s24 offen lds")
        k(f"s_add_u32 s24, s24, s28")
    tr_addr(k, 5, 6)
    k(f"""
    v_add_u32 v5, s27, v5
    v_mov_b32 v60, 0x3f803f80
    v_mov_b32 v61, 0x3f803f80
    v_mov_b32 v62, 0x3f803f80
    v_mov_b32 v63, 0x3f803f80
    s_waitcnt vmcnt(0)
    """)
    pst(2)
    for i in range(8):
        k(f"ds_read_b64_tr_b16 v[{8+4*i}:{9+4*i}], v5 offset:{1024*i}")
        k(f"ds_read_b64_tr_b16 v[{10+4*i}:{11+4*i}], v5 offset:{1024*i+512}")
        if i == 3: k("s_waitcnt lgkmcnt(0)")
    k("s_waitcnt lgkmcnt(0)")
    for i in range(8):
        k(f"v_mfma_f32_32x32x16_bf16 v[40:55], v[60:63], v[{8+4*i}:{11+4*i}], {'0' if i == 0 else 'v[40:55]'}")
    k(f"""
    v_and_b32 v5, 31, v2
    v_lshlrev_b32 v5, 2, v5
    v_add_u32 v5, 0x10000, v5
    s_lshl_b32 s24, s26, 7
    v_add_u32 v6, s24, v5
    """)
    k.nop(12)
    k(f"""
    ds_write_b32 v6, v40
    s_waitcnt lgkmcnt(0)
    s_barrier
    s_cmp_lg_u32 s26, 0
    s_cbranch_scc1 {end}
    """)
    for i in range(8):
        k(f"ds_read_b32 v{8+i}, v5 offset:{128*i}")
    k("s_waitcnt lgkmcnt(0)")
    for i in range(1, 8):
        k(f"v_add_f32 v8, v8, v{8+i}")
    k("v_cmp_gt_u32 vcc, 32, v2")
    k.nop(2)
    k("v_cndmask_b32 v8, 0, v8, vcc")
    split3_pack(k, 8, 9, 10, 12, "A")
    k("buffer_store_dwordx4 v[12:15], v3, s[16:19], s33 offen")
    pend()
    k(f"{end}:")
    k("s_endpgm")
    return k, dict(grid=tot, block=512, lds=65536 + 1024, vgpr=64, accum=64)

def emit_items(k, items):
    for x in items: k(x[-1])
def nvm(items): return len([x for x in items if x[0] == "vm"])

def lds_base(off):
    return (vL0, off) if off < 65536 else (vL1, off - 65536) if off < 131072 else (None, None)

class Ring:
    def __init__(self, NB, KS, R, NST, AB, L, acc, wf, act):
        self.__dict__.update(locals())
        self.Q = KS * NB; self.SLOT = self.Q * KB; self.P = self.Q // 4; self.RB = L + 1; self.BODY = R * self.Q
        assert self.BODY % self.RB == 0 and (R * KS) % AB == 0 and NST % R == 0 and (R * KS) % 4 == 0
        Q, P, BODY = self.Q, self.P, self.BODY
        self.sched = {}
        for s in range(R):
            q0 = s * Q + Q - L
            for p, o in enumerate(self.dma_ops(s + R - 1)):
                qq, rel = q0 + (p * Q) // P, 0
                if qq >= BODY: qq -= BODY; rel = -R
                self.sched.setdefault(qq, []).extend(
                    [(x[0], (x[1][0], x[1][1] + rel, x[1][2]), x[2]) if x[0] == "vm" else x for x in o])
        wrapped = {x[1] for lst in self.sched.values() for x in lst if x[0] == "vm" and x[1][1] == R - 2}
        self.wpro = []
        for s in range(R - 1):
            for p, o in enumerate(self.dma_ops(s)):
                if ("W", s, p) not in wrapped: self.wpro.append(o)
        self.wlast = [o for p, o in enumerate(self.dma_ops(R - 2)) if ("W", R - 2, p) not in wrapped]
        self.wtail = [o for p, o in enumerate(self.dma_ops(R - 2)) if ("W", R - 2, p) in wrapped]
    def setup_w(self, k, off, size, stage0=0):
        k(f"s_lshl_b32 s33, s{sNT}, 20")
        k(f"s_add_u32 s33, s33, {WT + off}")
        srd_off(k, SW, sWS, "s33", size)
        k(f"s_mul_i32 s{sLw}, s{sWV}, {self.P*KB}")
        k(f"s_add_u32 s{sWo}, s{sLw}, {stage0*self.SLOT}")
    def dma_ops(self, s, slot=None):
        out = []
        if slot is None: slot = s % self.R
        for p in range(self.P):
            o = []
            g = p // 4
            if p % 4 == 0:
                o.append(("txt", f"s_add_u32 m0, s{sLw}, {slot*self.SLOT + 4096*g}"))
                o.append(("txt", f"s_add_u32 s{sG1}, s{sWo}, {4096*g}" if g > 0 else "s_nop 0"))
            so = f"s{sWo}" if g == 0 else f"s{sG1}"
            o.append(("vm", ("W", s, p), f"buffer_load_dwordx4 v{vL0}, {S4(SW)}, {so} offen offset:{(p%4)*1024}{' nt' if CFG.get('wnt') else ''}{' sc1' if CFG.get('dbgw') else ''} lds"))
            if p == self.P - 1: o.append(("txt", f"s_add_u32 s{sWo}, s{sWo}, {0 if CFG.get('dbgw') == self.NB else self.SLOT}"))
            out.append(o)
        return out
    def act_load(self, lst, t):
        lst.append(("vm", ("A", t), f"buffer_load_dwordx4 {ar(self.act + 4*(t % self.AB), 4)}, v{vL0}, {S4(SA)}, s{sAo} offen offset:{(t%4)*1024}{LD}"))
        if t % 4 == 3: lst.append(("txt", f"s_add_u32 s{sAo}, s{sAo}, {0 if CFG.get('dbga') == self.NB else 4096}"))
    def dsread(self, q):
        base, off = lds_base((q % self.BODY) * KB)
        return f"ds_read_b128 {vr(self.wf + 4*(q % self.RB), 4)}, v{base} offset:{off}"
    def main(self, k, pro, cold=None, spec=None):
        NB, KS, R, Q, P, L, AB, BODY, RB = self.NB, self.KS, self.R, self.Q, self.P, self.L, self.AB, self.BODY, self.RB
        apro = []
        for t in range(AB): self.act_load(apro, t)
        pro2 = [("wait", ("W", 0, P - 1)), ("txt", "s_barrier")] + [("txt", self.dsread(q)) for q in range(L)]
        body = []
        for q in range(BODY):
            t, nb = q // NB, q % NB
            if nb == 0: body.append(("wait", ("A", t)))
            body.append(("txt", f"s_waitcnt lgkmcnt({L-1})"))
            a = self.acc + 16 * nb
            body.append(("txt", f"v_mfma_f32_32x32x16_bf16 {vr(a,16)}, {vr(self.wf + 4*(q % RB), 4)}, {ar(self.act + 4*(t % AB), 4)}, {vr(a,16)}"))
            if (q + L) % Q == 0:
                body.append(("wait", ("W", (q + L) // Q, P - 1)))
                body.append(("txt", "s_barrier"))
            body.append(("txt", self.dsread(q + L)))
            if nb == NB - 1: self.act_load(body, t + AB)
            body += self.sched.get(q, [])
        NIT = self.NST // R
        waits, issued = {}, []
        def shift(tag, it):
            return (tag[0], tag[1] + it * R * KS) if tag[0] == "A" else (tag[0], tag[1] + it * R, tag[2])
        def run(lst, it, key):
            for i, x in enumerate(lst):
                if x[0] == "vm": issued.append(shift(x[1], it))
                elif x[0] == "wait":
                    n = len(issued) - 1 - issued.index(shift(x[1], it))
                    waits[(key, i)] = min(waits.get((key, i), 63), n)
        run([x for o in self.wpro for x in o], 0, "w"); run(apro, 0, "a"); run(pro2, 0, "p2")
        for it in range(NIT): run(body, it, "b")
        def emit(lst, key):
            for i, x in enumerate(lst):
                if x[0] == "wait": k(f"s_waitcnt vmcnt({waits[(key, i)]})")
                else: k(x[-1])
        emit(apro, "a")
        pro(k, AB)
        emit(pro2, "p2")
        lp = k.label("loop")
        stamp(k)
        k(f"s_mov_b32 s{sCt}, {NIT}")
        k(f"{lp}:")
        emit(body, "b")
        k(f"s_sub_u32 s{sCt}, s{sCt}, 1")
        if spec:
            sp = k.label("spec")
            k(f"s_cmp_eq_u32 s{sCt}, {spec[0]}")
            k(f"s_cbranch_scc1 {sp}")
            cold(f"{sp}:")
            spec[1](cold)
            cold(f"s_branch {lp}")
        k(f"s_cmp_lg_u32 s{sCt}, 0")
        k(f"s_cbranch_scc1 {lp}")
        stamp(k)

def resident_w_pieces():
    out = []
    for p in range(32):
        o = []
        if p % 4 == 0:
            o.append(("txt", f"s_add_u32 m0, s{sLw}, {1024*p}"))
            o.append(("txt", f"s_add_u32 s{sG1}, s{sWo}, {1024*p}"))
        o.append(("vm", ("W", 0, p), f"buffer_load_dwordx4 v{vL0}, {S4(SG)}, s{sG1} offen offset:{(p%4)*1024} lds"))
        out.append(o)
    return out
def resident_setup(k, w_base, sh):
    k(f"""
    s_lshl_b32 s{sLw}, s{sWV}, 15
    s_lshl_b32 s{sWo}, s{sNT}, {sh}
    s_add_u32 s{sWo}, s{sWo}, s{sLw}
    s_add_u32 s{sWo}, s{sWo}, {w_base}
    """)

def act_ld(k, dst, t):
    k(f"buffer_load_dwordx4 {ar(dst,4)}, v{vL0}, {S4(SR)}, s{sAo} offen offset:{(t%4)*1024}{LD}")
    if t % 4 == 3: k(f"s_add_u32 s{sAo}, s{sAo}, 4096")

def resident_loop(k, acc, wf, act, AB, L=7, hook=None, late=None):
    RB = L + 1
    def rd(q):
        base, off = lds_base(q * KB)
        k(f"ds_read_b128 {vr(wf + 4*(q % RB), 4)}, v{base} offset:{off}")
    for q in range(L): rd(q)
    stamp(k)
    nx = 0
    for q in range(128):
        t, nb = q // 2, q % 2
        if nb == 0:
            if late and t == 64 - AB: nx = late(k)
            k(f"s_waitcnt vmcnt({min(AB, 64 - t) - 1 + nx})")
            if hook: hook(t)
        k(f"s_waitcnt lgkmcnt({min(L, 128 - q) - 1})")
        a = acc + 16 * nb
        k(f"v_mfma_f32_32x32x16_bf16 {vr(a,16)}, {vr(wf + 4*(q % RB), 4)}, {ar(act + 4*(t % AB), 4)}, {vr(a,16) if t > 0 else '0'}")
        if q + L < 128: rd(q + L)
        if nb == 1 and t + AB < 64: act_ld(k, act + 4 * (t % AB), t + AB)
    stamp(k)

def stats_issue(k, ST, vst, voff):
    k(f"""
    v_lshrrev_b32 v{voff}, 5, v{vLane}
    v_lshlrev_b32 v{voff}, 17, v{voff}
    v_and_b32 v{vst}, 31, v{vLane}
    v_lshl_add_u32 v{voff}, v{vst}, 3, v{voff}
    s_lshl_b32 s33, s{sTB}, 8
    s_add_u32 s33, s33, {ST}
    """)
    for i in range(8):
        k(f"buffer_load_dwordx2 {vr(vst+2*i, 2)}, v{voff}, {S4(SR)}, s33 offen{LD}")
        if i < 7: k("s_add_u32 s33, s33, 16384")

def stats_finish(k, vst, vmean, vrstd):
    for i in range(1, 8):
        k(f"v_add_f32 v{vst}, v{vst}, v{vst+2*i}")
        k(f"v_add_f32 v{vst+1}, v{vst+1}, v{vst+2*i+1}")
    k(f"v_mov_b32 v{vst+2}, v{vst}")
    k(f"v_mov_b32 v{vst+3}, v{vst+1}")
    k.nop(2)
    k(f"v_permlane32_swap_b32 v{vst}, v{vst+2}")
    k(f"v_permlane32_swap_b32 v{vst+1}, v{vst+3}")
    k.nop(1)
    k(f"""
    v_add_f32 v{vst}, v{vst}, v{vst+2}
    v_add_f32 v{vst+1}, v{vst+1}, v{vst+3}
    v_mul_f32 v{vmean}, {f32(-1.0/1024)}, v{vst}
    v_mul_f32 v{vst+1}, {f32(1.0/1024)}, v{vst+1}
    v_fma_f32 v{vst+1}, -v{vmean}, v{vmean}, v{vst+1}
    v_max_f32 v{vst+1}, 0, v{vst+1}
    v_add_f32 v{vst+1}, {f32(1e-5)}, v{vst+1}
    v_rsq_f32 v{vrstd}, v{vst+1}
    """)
    k.nop(1)

def spin_check(k, load, regs, nwait, cold):
    ok, sp = k.label("ok"), k.label("spin")
    def test(kk):
        r = regs[0]
        if len(regs) > 1:
            kk(f"v_min_u32 v{regs[0]}, v{regs[0]}, v{regs[1]}")
            for x in regs[2:]: kk(f"v_min_u32 v{regs[0]}, v{regs[0]}, v{x}")
        kk(f"v_cmp_eq_u32 vcc, 0, v{r}")
        kk("s_cmp_lg_u64 vcc, 0")
    k(f"s_waitcnt vmcnt({nwait})")
    test(k)
    k(f"s_cbranch_scc1 {sp}")
    k(f"{ok}:")
    c = cold
    lp = k.label("sl")
    c(f"{sp}:")
    c(f"s_mov_b32 s32, {SPIN}")
    c(f"{lp}:")
    c(load)
    c("s_waitcnt vmcnt(0)")
    test(c)
    c(f"s_cbranch_scc0 {ok}")
    c("s_sub_u32 s32, s32, 1")
    c("s_cmp_lg_u32 s32, 0")
    c(f"s_cbranch_scc1 {lp}")
    c(f"s_branch {ok}")

def handoff(k, cold, pieces, n1, n2, fpub, fwait, vpoll, vtmp):
    nv = lambda ps: sum(nvm(p) for p in ps)
    for p in pieces[:n1]: emit_items(k, p)
    safe, back = k.label("safe"), k.label("back")
    k(f"""
    s_lshl_b32 s33, s{sTB}, 7
    s_lshl_b32 s32, s{sNT}, 2
    s_add_u32 s33, s33, s32
    s_add_u32 s33, s33, {fpub}
    s_cmp_lg_u32 s{sMODE}, 0
    s_cbranch_scc1 {safe}
    s_waitcnt vmcnt({nv(pieces[:n1])})
    s_mov_b64 exec, 1
    buffer_store_dword v{vOne}, off, {S4(SR)}, s33
    s_mov_b64 exec, -1
    {back}:
    """)
    cold(f"""
    {safe}:
    s_waitcnt vmcnt(0)
    buffer_wbl2 sc1
    s_waitcnt vmcnt(0)
    s_mov_b64 exec, 1
    buffer_store_dword v{vOne}, off, {S4(SR)}, s33 sc1
    s_mov_b64 exec, -1
    s_branch {back}
    """)
    stamp(k)
    for p in pieces[n1:n2]: emit_items(k, p)
    k(f"s_mov_b32 s35, {fwait}")
    load = f"buffer_load_dword v{vtmp}, v{vpoll}, {S4(SR)}, s35 offen sc1"
    k(load)
    for p in pieces[n2:]: emit_items(k, p)
    spin_check(k, load, [vtmp], nv(pieces[n2:]), cold)
    acq, back2 = k.label("acq"), k.label("back")
    k(f"s_cmp_lg_u32 s{sMODE}, 0")
    k(f"s_cbranch_scc1 {acq}")
    k(f"{back2}:")
    cold(f"""
    {acq}:
    buffer_inv sc1
    s_waitcnt vmcnt(0)
    s_branch {back2}
    """)
    stamp(k)

def x_epilogue(k, acc, pk, XO, STO):
    k(f"""
    v_mov_b32 v{pk+16}, 0
    v_mov_b32 v{pk+17}, 0
    v_mov_b32 v{pk+18}, 0x3f803f80
    v_and_b32 v5, 31, v{vLane}
    v_lshlrev_b32 v5, 3, v5
    s_lshl_b32 s35, s{sTB}, 16
    s_lshl_b32 s33, s{sNT}, 12
    s_add_u32 s35, s35, s33
    s_add_u32 s35, s35, {XO}
    s_lshl_b32 s32, s{sNT}, 14
    s_lshl_b32 s33, s{sTB}, 8
    s_add_u32 s32, s32, s33
    s_add_u32 s32, s32, {STO}
    """)
    for i in range(16): k(f"v_cvt_pk_bf16_f32 v{pk+i}, v{acc+2*i}, v{acc+2*i+1}")
    for q in range(4):
        k(f"buffer_store_dwordx4 {vr(pk+4*q,4)}, v{vL0}, {S4(SR)}, s35 offen offset:{1024*q}")
    for i in range(16):
        k(f"v_dot2_f32_bf16 v{pk+16}, v{pk+i}, v{pk+18}, v{pk+16}")
        k(f"v_dot2_f32_bf16 v{pk+17}, v{pk+i}, v{pk+i}, v{pk+17}")
    k.nop(3)
    k(f"v_mov_b32 v{pk+20}, v{pk+16}")
    k(f"v_mov_b32 v{pk+21}, v{pk+17}")
    k.nop(2)
    k(f"v_permlane32_swap_b32 v{pk+16}, v{pk+20}")
    k(f"v_permlane32_swap_b32 v{pk+17}, v{pk+21}")
    k.nop(1)
    k(f"v_add_f32 v{pk+16}, v{pk+16}, v{pk+20}")
    k(f"v_add_f32 v{pk+17}, v{pk+17}, v{pk+21}")
    k(f"buffer_store_dwordx2 {vr(pk+16,2)}, v5, {S4(SR)}, s32 offen")
    for i in range(16): k(f"v_accvgpr_write_b32 a{aX+i}, v{pk+i}")

def residual(k, acc):
    for nb in range(2):
        for half in range(2):
            a = acc + 16 * nb
            k(f"v_mfma_f32_32x32x16_bf16 {vr(a,16)}, {ar(aID+4*half,4)}, {ar(aX+4*(2*nb+half),4)}, {vr(a,16)}")

aWKV, aCQ = 128, 192
def kvw_pieces():
    ex = []
    for i in range(16):
        o = []
        if i % 4 == 0: o.append(("txt", f"s_add_u32 s34, s83, {1024*i}"))
        o.append(("vm", ("X", i), f"buffer_load_dwordx4 {ar(aWKV+4*i,4)}, v{vL0}, {S4(SG)}, s34 offen offset:{(i%4)*1024}"))
        ex.append(o)
    ex.append([("txt", f"s_lshl_b32 s34, s{sNT}, 11"),
               ("vm", ("X", 16), f"buffer_load_dwordx4 {ar(aCQ,4)}, v{vL0}, {S4(SG)}, s34 offen")])
    ex.append([("vm", ("X", 17), f"buffer_load_dwordx4 {ar(aCQ+4,4)}, v{vL0}, {S4(SG)}, s34 offen offset:1024")])
    ex.append([("vm", ("X", 18), f"buffer_load_dwordx4 {ar(aCQ+8,4)}, v{vL0}, {S4(SG)}, s84 offen")])
    return ex

def gen_main():
    k = K("main_kernel")
    cold = K("main_cold")
    k.uid = 1000
    end = k.label("end")
    QS = (32 ** -0.5) * LOG2E
    k(f"""
    s_cmp_ge_u32 s2, 256
    s_cbranch_scc1 {end}
    s_load_dwordx2 s[4:5], s[0:1], {A_WS}
    s_load_dwordx2 s[6:7], s[0:1], {A_OUT}
    s_load_dwordx4 s[48:51], s[0:1], {A_W1}
    v_lshrrev_b32 v1, 6, v0
    v_and_b32 v{vLane}, 63, v0
    v_readfirstlane_b32 s{sWV}, v1
    v_lshlrev_b32 v{vL0}, 4, v{vLane}
    v_add_u32 v{vL1}, 0x10000, v{vL0}
    s_and_b32 s{sMT}, s2, 7
    s_lshl_b32 s{sMT}, s{sMT}, 1
    s_lshr_b32 s32, s2, 7
    s_add_u32 s{sMT}, s{sMT}, s32
    s_lshr_b32 s{sNT}, s2, 3
    s_and_b32 s{sNT}, s{sNT}, 15
    s_lshl_b32 s{sTB}, s{sMT}, 2
    s_lshr_b32 s32, s{sNT}, 2
    s_add_u32 s{sTBs}, s{sTB}, s32
    s_add_u32 s{sTB}, s{sTB}, s{sWV}
    s_mov_b32 s{sLY}, 0
    s_mov_b32 s{sMODE}, 1
    s_mov_b32 s{sSEL}, 0x07060302
    s_mov_b32 s{sL2E}, {f32(-LOG2E)}
    s_mov_b32 s{sL2E+1}, {f32(-LOG2E)}
    s_getreg_b32 s{sXCC}, hwreg(HW_REG_XCC_ID)
    s_and_b32 s{sXCC}, s{sXCC}, 15
    s_add_u32 s{sXCC}, s{sXCC}, 1
    """)
    if PROF:
        k("s_mov_b32 s72, 0"); k("v_mov_b32 v255, 0")
        k("s_memrealtime s[70:71]"); k("s_waitcnt lgkmcnt(0)"); k("v_writelane_b32 v255, s70, 61")
    k(f"""
    s_lshr_b32 s32, s{sNT}, 1
    s_and_b32 s32, s32, 1
    s_add_u32 s{sKVr}, s32, 1
    s_lshl_b32 s83, s32, 16
    s_lshl_b32 s33, s{sWV}, 14
    s_add_u32 s83, s83, s33
    s_add_u32 s83, s83, {WKV}
    s_lshl_b32 s84, s32, 10
    s_add_u32 s84, s84, {CQ + 32*KB}
    s_lshl_b32 s{sKVf}, s{sTBs}, 1
    s_add_u32 s{sKVf}, s{sKVf}, s32
    s_lshl_b32 s{sKVf}, s{sKVf}, 2
    s_add_u32 s{sKVf}, s{sKVf}, {KVF}
    s_cmp_eq_u32 s{sTBs}, s{sTB}
    s_cselect_b32 s{sKVf}, s{sKVf}, {OOB}
    s_bitcmp1_b32 s{sNT}, 0
    s_cselect_b32 s{sKVr}, 0, s{sKVr}
    s_cselect_b32 s{sKVf}, {OOB}, s{sKVf}
    s_cselect_b32 s83, {OOB}, s83
    s_cselect_b32 s{sTBs}, s{sTB}, s{sTBs}
    s_waitcnt lgkmcnt(0)
    """)
    srd(k, SG, "s4", "s5", GS)
    srd_off(k, SR, sWS, GS, 2 * RS)
    stamp(k)
    acc, kva, wf, vst, bc = 8, 40, 56, 88, 104
    vmean, vrs = 5, 6
    AB = 16
    aKA = 64
    def kv_act():
        k(f"""
        s_lshl_b32 s{sAo}, s{sTBs}, 16
        s_lshl_b32 s33, s{sWV}, 14
        s_add_u32 s{sAo}, s{sAo}, s33
        s_cmp_eq_u32 s{sKVr}, 0
        s_cselect_b32 s{sAo}, {OOB}, s{sAo}
        """)
        for t in range(16): act_ld(k, aKA + 4 * t, t)
    def own_act():
        k(f"s_lshl_b32 s{sAo}, s{sTB}, 16")
        for t in range(AB): act_ld(k, 4 * t, t)
    assert XIN == 0
    stats_issue(k, STIN, vst, 7)
    for p in kvw_pieces(): emit_items(k, p)
    kv_act()
    resident_setup(k, WT + TQ, 20)
    wq = resident_w_pieces()
    for p in wq[:16]: emit_items(k, p)
    k(f"""
    v_mov_b32 v{vOne}, s{sXCC}
    s_lshl_b32 s33, s{sMT}, 7
    s_lshl_b32 s32, s{sNT}, 2
    s_add_u32 s33, s33, s32
    s_add_u32 s33, s33, {XCC}
    s_cmp_eq_u32 s{sWV}, 0
    s_cselect_b32 s33, s33, {OOB}
    s_mov_b64 exec, 1
    buffer_store_dword v{vOne}, off, {S4(SG)}, s33 sc1
    s_mov_b64 exec, -1
    """)
    k(f"""
    v_and_b32 v5, 15, v{vLane}
    v_lshlrev_b32 v5, 2, v5
    s_lshl_b32 s32, s{sTB}, 7
    v_add_u32 v{vPoll}, s32, v5
    s_lshl_b32 s32, s{sTBs}, 7
    v_add_u32 v{vPollA}, s32, v5
    v_cmp_gt_u32 vcc, 16, v{vLane}
    v_mov_b32 v{vOne}, 1
    s_nop 0
    v_cndmask_b32 v{vPollA}, v{vPollA}, v{vPoll}, vcc
    s_lshl_b32 s32, s{sTB}, 7
    s_xor_b32 s33, s{sNT}, 1
    s_lshl_b32 s33, s33, 2
    s_add_u32 s33, s33, s32
    v_mov_b32 v{vPollE}, s33
    s_and_b32 s33, s{sNT}, 1
    s_lshl_b32 s33, s33, 5
    s_add_u32 s33, s33, s32
    v_and_b32 v5, 28, v5
    v_add_u32 v{vPollH}, s33, v5
    """)
    k(f"""
    v_and_b32 v5, 31, v{vLane}
    v_lshrrev_b32 v6, 5, v{vLane}
    v_lshlrev_b32 v6, 2, v6
    v_sub_u32 v5, v5, v6
    v_mov_b32 v6, 0x3f80
    """)
    for half in range(2):
        for i, zb in enumerate((0, 2, 8, 10)):
            d = 8 + 4 * half + i
            k(f"v_subrev_u32 v{d}, {zb + 16*half}, v5")
            k(f"v_cmp_gt_u32 vcc, 2, v{d}")
            k(f"v_lshlrev_b32 v{d}, 4, v{d}")
            k(f"v_lshlrev_b32 v{d}, v{d}, v6")
            k(f"v_cndmask_b32 v{d}, 0, v{d}, vcc")
    for i in range(8): k(f"v_accvgpr_write_b32 a{aID+i}, v{8+i}")
    k(f"""
    v_lshrrev_b32 v6, 4, v{vLane}
    v_lshrrev_b32 v7, 2, v{vLane}
    v_xor_b32 v6, v6, v7
    v_and_b32 v6, 1, v6
    v_cmp_eq_u32 vcc, 0, v6
    v_mov_b32 v7, 0x3f803f80
    s_nop 0
    v_cndmask_b32 v6, 0, v7, vcc
    """)
    k.nop(1)
    for i in range(4): k(f"v_accvgpr_write_b32 a{aON+i}, v6")
    l1, lo_, l2, join = k.label("p1"), k.label("po"), k.label("p2"), k.label("pj")
    k(f"""
    s_and_b32 s32, s2, 7
    s_lshl_b32 s32, s32, 5
    s_lshr_b32 s33, s2, 3
    s_add_u32 s32, s32, s33
    s_lshl_b32 s34, s{sWV}, 4
    s_mov_b32 s{sCorr}, {OOB}
    s_mov_b32 s{sDsz}, {GS}
    s_cmp_ge_u32 s32, 112
    s_cbranch_scc1 {l2}
    s_mov_b32 s{SP}, s48
    s_mov_b32 s{SP+1}, s49
    s_mov_b32 s{sPsz}, {1024*7168}
    s_mov_b32 s{sPss}, 7168
    s_mul_i32 s{sPd}, s32, 9363
    s_lshr_b32 s{sPd}, s{sPd}, 16
    s_mul_i32 s35, s{sPd}, 7
    s_sub_u32 s35, s32, s35
    s_lshl_b32 s{sPd}, s{sPd}, 10
    s_add_u32 s{sPd}, s{sPd}, s35
    s_lshl_b32 s{sPd}, s{sPd}, 10
    s_add_u32 s{sPd}, s{sPd}, {WT + T1}
    s_mov_b32 s{sPds}, 7168
    s_lshl_b32 s{sCorr}, s32, 10
    s_add_u32 s{sCorr}, s{sCorr}, {C1}
    s_branch {join}
    {l2}:
    s_mov_b32 s{SP}, s50
    s_mov_b32 s{SP+1}, s51
    s_cmp_ge_u32 s32, 224
    s_cselect_b32 s{sPsz}, 0, {3584*2048}
    s_cselect_b32 s{sDsz}, 0, s{sDsz}
    s_mov_b32 s{sPss}, 2048
    s_sub_u32 s35, s32, 112
    s_lshl_b32 s35, s35, 2
    s_add_u32 s35, s35, s{sWV}
    s_mul_i32 s32, s35, 4682
    s_lshr_b32 s32, s32, 16
    s_mul_i32 s34, s32, 14
    s_sub_u32 s34, s35, s34
    s_lshl_b32 s34, s34, 4
    s_lshr_b32 s{sPd}, s32, 2
    s_lshl_b32 s{sPd}, s{sPd}, 11
    s_and_b32 s35, s32, 3
    s_cmp_ge_u32 s34, 112
    s_cselect_b32 s33, 2, 0
    s_xor_b32 s35, s35, s33
    s_add_u32 s{sPd}, s{sPd}, s35
    s_mul_i32 s33, s33, {(1024 - 448) // 2}
    s_add_u32 s{sPd}, s{sPd}, s33
    s_lshl_b32 s{sPd}, s{sPd}, 10
    s_add_u32 s{sPd}, s{sPd}, {WT + T2}
    s_mov_b32 s{sPds}, 4096
    {join}:
    s_mov_b32 s{SP+2}, 0
    s_mov_b32 s{SP+3}, 0x20000
    v_lshrrev_b32 v{vPk}, 2, v{vLane}
    v_mul_lo_u32 v{vPk}, v{vPk}, s{sPss}
    v_and_b32 v5, 3, v{vLane}
    v_lshl_add_u32 v{vPk}, v5, 4, v{vPk}
    s_lshl_b32 s{sPss}, s{sPss}, 4
    s_mul_i32 s{sPs}, s34, s{sPss}
    s_lshl_b32 s32, s32, 6
    s_add_u32 s{sPs}, s{sPs}, s32
    s_mul_i32 s34, s34, s{sPds}
    s_add_u32 s{sPd}, s{sPd}, s34
    s_lshl_b32 s{sSp2}, s2, 2
    s_add_u32 s{sSp2}, s{sSp2}, {WPF}
    s_cmp_eq_u32 s{sWV}, 0
    s_cselect_b32 s{sSp2}, s{sSp2}, {OOB}
    """)
    srd(k, SD, "s4", "s5", f"s{sDsz}")
    k(f"v_lshlrev_b32 v{vTch}, 7, v{vLane}")
    k(f"s_mov_b32 s{sTch}, {OOB}")
    k(f"s_mov_b32 s{sT2}, {OOB}")
    k(f"s_and_b32 s{sXS}, s{sMT}, 1")
    k(f"s_lshl_b32 s{sXS}, s{sXS}, 2")
    k(f"s_add_u32 s{sXS}, s{sXS}, s{sWV}")
    tr_addr(k, vTr, 5)
    k(f"s_lshl_b32 s32, s{sWV}, 12")
    k(f"v_add_u32 v{vTr}, s32, v{vTr}")

    qgo = k.label("qgo")
    def kv_math(ny, after, bar=False):
        nokv, kvV, kvj = k.label("nokv"), k.label("kvV"), k.label("kvj")
        k(f"s_waitcnt vmcnt({min(63, 16+ny)})")
        if bar: k("s_barrier")
        stats_finish(k, vst, vmean, vrs)
        split3_pack(k, vmean, vst, vst + 1, bc, "B")
        k(f"s_cmp_eq_u32 s{sKVr}, 0")
        k(f"s_cbranch_scc1 {kvj}")
        k(f"s_lshl_b32 s33, s{sWV}, 12")
        k(f"s_add_u32 s33, s33, 0x20000")
        k(f"v_add_u32 v7, s33, v{vL0}")
        k(f"s_cmp_eq_u32 s{sKVr}, 2")
        k(f"s_cbranch_scc1 {kvV}")
        for role in "KV":
            if role == "V": k(f"{kvV}:")
            for i in range(16):
                if i % 4 == 0: k(f"s_waitcnt vmcnt({ny + 12 - i})")
                w_, a_ = ar(aWKV + 4 * i, 4), ar(aKA + 4 * i, 4)
                A_, B_ = (w_, a_) if role == "K" else (a_, w_)
                k(f"v_mfma_f32_32x32x16_bf16 {vr(kva,16)}, {A_}, {B_}, {vr(kva,16) if i else '0'}")
            k.nop(12)
            for q in range(4): k(f"ds_write_b128 v7, {vr(kva+4*q,4)} offset:{1024*q}")
            k("s_waitcnt lgkmcnt(0)")
            k("s_barrier")
            k(f"s_cmp_lg_u32 s{sTBs}, s{sTB}")
            k(f"s_cbranch_scc1 {kvj}")
            k(f"v_add_u32 v7, 0x20000, v{vL0}")
            A_, B_ = (ar(aCQ + 8, 4), vr(bc, 4)) if role == "K" else (vr(bc, 4), ar(aCQ + 8, 4))
            k(f"v_mfma_f32_32x32x16_bf16 {vr(kva,16)}, {A_}, {B_}, 0")
            T = 108
            for w in range(4):
                for q in range(4): k(f"ds_read_b128 {vr(T+16*w+4*q,4)}, v7 offset:{4096*w+1024*q}")
                if w == 1: k("s_waitcnt lgkmcnt(4)")
            if role == "V":
                k(f"""
                v_and_b32 v{vst}, 31, v{vLane}
                v_lshlrev_b32 v{vst}, 2, v{vst}
                v_add_u32 v{vst}, 0x24000, v{vst}
                ds_write_b32 v{vst}, v{vrs}
                v_lshrrev_b32 v{vst+1}, 5, v{vLane}
                v_lshlrev_b32 v{vst+1}, 4, v{vst+1}
                v_add_u32 v{vst+1}, 0x24000, v{vst+1}
                s_waitcnt lgkmcnt(0)
                """)
                for g in range(4): k(f"ds_read_b128 {vr(wf+4*g,4)}, v{vst+1} offset:{32*g}")
            k(f"s_lshl_b32 s35, s{sTB}, 12")
            k(f"s_add_u32 s35, s35, {KV + (0 if role == 'K' else 2048)}")
            k("s_waitcnt lgkmcnt(0)")
            for w in range(4):
                for i in range(8): k(f"v_pk_add_f32 {vr(kva+2*i,2)}, {vr(kva+2*i,2)}, {vr(T+16*w+2*i,2)}")
            for i in range(16): k(f"v_mul_f32 v{kva+i}, v{kva+i}, v{vrs if role == 'K' else wf+i}")
            for i in range(8): k(f"v_cvt_pk_bf16_f32 v{T+i}, v{kva+2*i}, v{kva+2*i+1}")
            for half in range(2):
                k(f"buffer_store_dwordx4 {vr(T+4*half,4)}, v{vL0}, {S4(SR)}, s35 offen offset:{1024*half} sc1")
            if role == "K": k(f"s_branch {kvj}")
        k(f"{kvj}:")
        after()
    stamp(k)
    def after0():
        for p in wq[16:]: emit_items(k, p)
        k(f"""
        s_lshl_b32 s35, s{sTB}, 16
        s_lshl_b32 s33, s{sNT}, 12
        s_add_u32 s35, s35, s33
        """)
        for q in range(4): k(f"buffer_load_dwordx4 {ar(aX+4*q,4)}, v{vL0}, {S4(SR)}, s35 offen offset:{1024*q}")
        own_act()
        k(f"s_waitcnt vmcnt({AB})")
        k("s_barrier")
        k(f"s_branch {qgo}")
    kv_math(16, after0)
    layer = k.label("layer")
    k(f"{layer}:")
    if PROF:
        k("s_memrealtime s[70:71]"); k("s_waitcnt lgkmcnt(0)"); k("v_writelane_b32 v255, s70, 60")
    stamp(k)
    stats_issue(k, STIN, vst, 7)
    kv_act()
    own_act()
    kv_math(AB, lambda: None, bar=True)
    k(f"{qgo}:")
    HT = CFG.get("ht", 10)
    def hook(t):
        if t == HT:
            k(f"s_waitcnt vmcnt({HT})")
            k("s_mov_b64 exec, 1")
            k(f"buffer_store_dword v{vOne}, off, {S4(SR)}, s{sKVf} sc1")
            k("s_mov_b64 exec, -1")
    resident_loop(k, acc, wf, 0, AB, hook=hook)
    Qr, CI, S0, Pr, Or, Lr = 112, 128, 160, 192, 200, 232
    KBUF, VBUF, PKT = 56, 72, 88
    vcur, vnxt, vcs = 104, 105, 106
    aCS, aALL = 0, 16
    kvload = f"buffer_load_dwordx2 v[240:241], v7, {S4(SR)}, s35 offen sc1"
    k(f"v_lshlrev_b32 v7, 3, v{vLane}")
    k(f"s_mov_b32 s35, {KVF}")
    k(kvload)
    for nb in range(2):
        a = acc + 16 * nb
        k(f"v_mfma_f32_32x32x16_bf16 {vr(a,16)}, {ar(aCQ+4*nb,4)}, {vr(bc,4)}, {vr(a,16)}")
    k(f"v_mul_f32 v{vrs}, {f32(QS)}, v{vrs}")
    for i in range(32): k(f"v_mov_b32 v{Or+i}, 0")
    for i in range(8): k(f"v_mov_b32 v{Lr+i}, 0")
    for i in range(8): k(f"v_mov_b32 v{Pr+i}, 0")
    for i in range(32): k(f"v_mul_f32 v{acc+i}, v{acc+i}, v{vrs}")
    for i in range(16): k(f"v_cvt_pk_bf16_f32 v{Qr+i}, v{acc+2*i}, v{acc+2*i+1}")
    k("s_barrier")
    stamp(k)
    k(f"s_add_u32 s{SW}, s{SR}, {KV}")
    k(f"s_addc_u32 s{SW+1}, s{SR+1}, 0")
    k(f"s_mov_b32 s{SW+2}, {256*KB}")
    k(f"s_mov_b32 s{SW+3}, 0x20000")
    k(f"""
    s_lshl_b32 s{sWo}, s{sWV}, 13
    s_add_u32 s{sDst}, s{sWo}, 0x10000
    s_add_u32 s{sLw}, s{sWo}, 0x28000
    s_mov_b32 s{sCur}, 0x10000
    s_mov_b32 s{sNxt}, 0x18000
    s_mov_b32 s{SP+2}, s{sPsz}
    """)
    spin_check(k, kvload, [240, 241], 0, cold)
    stamp(k)
    def kv_piece(p):
        pre, post = [], []
        if p % 4 == 0:
            pre = [f"s_add_u32 m0, s{sDst}, {1024*p}"]
        if p == 3: post = [f"s_add_u32 s{sWo}, s{sWo}, 4096"]
        if p == 4: post = [f"s_add_u32 s{sDst}, s{sDst}, 0x8000"]
        if p == 5: post = [f"s_sub_u32 s{sG1}, s{sDst}, 0x18000"]
        if p == 6: pre = [f"s_cmp_ge_u32 s{sDst}, s{sLw}"]; post = [f"s_cselect_b32 s{sDst}, s{sG1}, s{sDst}"]
        if p == 7: post = [f"s_add_u32 s{sWo}, s{sWo}, {0x8000-4096}"]
        return pre, f"buffer_load_dwordx4 v{vL0}, {S4(SW)}, s{sWo} offen offset:{1024*(p%4)} sc1 lds", post
    def kv_emit(p):
        pre, d, post = kv_piece(p)
        for x in pre: k(x)
        if pre: k("s_nop 0")
        k(d)
        for x in post: k(x)
    def pack_piece(i):
        return [f"s_add_u32 m0, s87, {1024*i}"], f"buffer_load_dwordx4 v{vPk}, {S4(SP)}, s{sPs} offen nt lds", [f"s_add_u32 s{sPs}, s{sPs}, s{sPss}"]
    k(f"s_lshl_b32 s87, s{sWV}, 12")
    for p in range(8): kv_emit(p)
    for i in range(4):
        pre, d, post = pack_piece(i)
        k(pre[0]); k("s_nop 0"); k(d); k(post[0])
    kv_emit(0); kv_emit(1)
    k(f"v_mov_b32 v7, 0x3f803f80")
    for i in range(16): k(f"v_accvgpr_write_b32 a{aCS+i}, 0")
    for i in range(4): k(f"v_accvgpr_write_b32 a{aALL+i}, v7")
    for i in range(8): k(f"v_mov_b32 v{VBUF+8+i}, 0")
    k(f"""
    v_add_u32 v{vcur}, s{sCur}, v{vL0}
    v_add_u32 v{vnxt}, s{sNxt}, v{vL0}
    v_and_b32 v{vcs}, 31, v{vLane}
    v_lshlrev_b32 v{vcs}, 2, v{vcs}
    s_lshl_b32 s33, s{sWV}, 7
    s_add_u32 s33, s33, 0x4000
    v_add_u32 v{vcs}, s33, v{vcs}
    v_mov_b32 v{vT2}, 0
    s_waitcnt vmcnt(6)
    s_barrier
    """)
    for f in range(2): k(f"ds_read_b128 {vr(KBUF+4*f,4)}, v{vcur} offset:{1024*f}")
    for f in range(2): k(f"ds_read_b128 {vr(VBUF+4*f,4)}, v{vcur} offset:{2048+1024*f}")
    k("s_waitcnt lgkmcnt(2)")
    for qt in range(2):
        sx = S0 + 16 * qt
        k(f"v_mfma_f32_32x32x16_bf16 {vr(sx,16)}, {vr(KBUF,4)}, {vr(Qr+8*qt,4)}, 0")
        k(f"v_mfma_f32_32x32x16_bf16 {vr(sx,16)}, {vr(KBUF+4,4)}, {vr(Qr+8*qt+4,4)}, {vr(sx,16)}")
    k.nop(10)
    def tile_max(kk, dst, src, tmp):
        kk(f"v_max3_f32 v{dst}, v{src}, v{src+1}, v{src+2}")
        for i in range(3, 15, 2): kk(f"v_max3_f32 v{dst}, v{dst}, v{src+i}, v{src+i+1}")
        kk(f"v_max_f32 v{dst}, v{dst}, v{src+15}")
        kk(f"v_mov_b32 v{tmp}, v{dst}")
        kk.nop(2)
        kk(f"v_permlane32_swap_b32 v{dst}, v{tmp}")
        kk.nop(1)
        kk(f"v_max_f32 v{dst}, v{dst}, v{tmp}")
    for qt in range(2):
        tile_max(k, 6, S0 + 16 * qt, 7)
        for i in range(16): k(f"v_sub_f32 v{CI+16*qt+i}, 0, v6")
        if qt == 0:
            for i in range(16): k(f"v_sub_f32 v{S0+i}, v{S0+i}, v6")
    k("s_waitcnt lgkmcnt(0)")
    def body(pack):
        for v in range(16):
            t, qt = v // 2, v % 2
            c, n = S0 + 16 * qt, S0 + 16 * (1 - qt)
            e = lambda i: k(f"v_exp_f32 v{c+i}, v{c+i}")
            cv = lambda i: k(f"v_cvt_pk_bf16_f32 v{Pr+i}, v{c+2*i}, v{c+2*i+1}")
            oq, tn, tp = 1 - qt, t + qt, t - 1 + qt
            Kn, Vc, Vp = KBUF + 8 * (tn % 2), VBUF + 8 * (t % 2), VBUF + 8 * (tp % 2)
            base = vcur if t + 1 < 8 else vnxt
            dst = (KBUF if qt == 0 else VBUF) + 8 * ((t + 1) % 2)
            rd = [f"ds_read_b128 {vr(dst+4*j,4)}, v{base} offset:{((t+1) % 8)*4096 + 2048*qt + 1024*j}" for j in range(2)]
            sl = [[] for _ in range(6)]
            tail = []
            if v == 14:
                sl[0].append("s_barrier"); sl[1].append(rd[0]); sl[2].append(rd[1])
            else:
                sl[0].append(rd[0]); sl[1].append(rd[1])
            vm = None
            if v >= 14 or v < 6: vm = kv_piece((v + 2) % 16)
            if pack and 10 <= v < 14: vm = pack_piece(v - 10)
            if vm:
                sl[2] += vm[0]; sl[3].append(vm[1]); sl[4] += vm[2]
            if v == 13: sl[4].append(f"s_waitcnt vmcnt({8 if pack else 2})")
            if v == 7 and not pack:
                sl[3].append(f"buffer_load_dword v{vDum}, v{vT2}, {S4(SR)}, s{sT2} offen sc1"); sl[4].append(f"s_mov_b32 s{sT2}, {OOB}")
            if v == 6 and not pack:
                sl[3].append(f"buffer_load_dword v{vDum}, v{vTch}, {S4(SG)}, s{sTch} offen"); sl[4].append(f"s_mov_b32 s{sTch}, {OOB}")
            if v == 8: sl[2] += [f"s_mov_b32 s{sCur}, s{sNxt}"] if False else []
            if pack:
                tr = lambda i: [f"ds_read_b64_tr_b16 {vr(PKT+4*i,2)}, v{vTr} offset:{1024*i}", f"ds_read_b64_tr_b16 {vr(PKT+4*i+2,2)}, v{vTr} offset:{1024*i+512}"]
                st = lambda i: [f"buffer_store_dwordx4 {vr(PKT+4*i,4)}, v{vL0}, {S4(SD)}, s{sPd} offen sc1", f"s_add_u32 s{sPd}, s{sPd}, s{sPds}"]
                cs = lambda i: f"v_mfma_f32_32x32x16_bf16 {ar(aCS,16)}, {ar(aALL,4)}, {vr(PKT+4*i,4)}, {ar(aCS,16)}"
                if v == 6:
                    sl[1].append("s_waitcnt vmcnt(8)"); sl[2] += tr(0); sl[3] += tr(1)
                if v == 7:
                    sl[2] += tr(2); sl[3] += tr(3); sl[4] += st(0); tail.append(cs(0))
                if v == 8:
                    sl[3] += st(1); tail.append(cs(1)); sl[2].append(f"s_cmp_gt_u32 s{sCt}, 5"); sl[4].append(f"s_cselect_b32 s{SP+2}, s{sPsz}, 0")
                    sl[3] = [st(1)[0]]; sl[5].append(st(1)[1])
                if v == 9:
                    sl[2] += st(2); sl[4] += st(3); tail.append(cs(2))
                if v == 10: tail.append(cs(3))
                if v == 12: sl[1].append(f"ds_write_b32 v{vcs}, a{aCS}")
            sl[5].insert(0, "s_waitcnt lgkmcnt(0)")
            def M(txt, i):
                k(txt)
                for x in sl[i]: k(x)
            e(0); e(1); e(2)
            M(f"v_mfma_f32_32x32x16_bf16 {vr(Or+16*oq,16)}, {vr(Vp+4,4)}, {vr(Pr+4,4)}, {vr(Or+16*oq,16)}", 0)
            e(3); e(4); e(5)
            M(f"v_mfma_f32_16x16x32_bf16 {vr(Lr+4*oq,4)}, {ar(aON,4)}, {vr(Pr+4,4)}, {vr(Lr+4*oq,4)}", 1)
            e(6); e(7); cv(0); cv(1)
            M(f"v_mfma_f32_32x32x16_bf16 {vr(n,16)}, {vr(Kn,4)}, {vr(Qr+8*oq,4)}, {vr(CI+16*oq,16)}", 2)
            cv(2); cv(3); e(8); e(9); e(10)
            M(f"v_mfma_f32_32x32x16_bf16 {vr(n,16)}, {vr(Kn+4,4)}, {vr(Qr+8*oq+4,4)}, {vr(n,16)}", 3)
            e(11); e(12); e(13)
            M(f"v_mfma_f32_32x32x16_bf16 {vr(Or+16*qt,16)}, {vr(Vc,4)}, {vr(Pr,4)}, {vr(Or+16*qt,16)}", 4)
            e(14); e(15); cv(4); cv(5)
            M(f"v_mfma_f32_16x16x32_bf16 {vr(Lr+4*qt,4)}, {ar(aON,4)}, {vr(Pr,4)}, {vr(Lr+4*qt,4)}", 5)
            cv(6); cv(7)
            for x in tail: k(x)
        k(f"""
        s_add_u32 s{sNxt}, s{sNxt}, 0x8000
        s_cmp_ge_u32 s{sNxt}, 0x28000
        s_cselect_b32 s{sNxt}, 0x10000, s{sNxt}
        v_mov_b32 v{vcur}, v{vnxt}
        v_add_u32 v{vnxt}, s{sNxt}, v{vL0}
        s_sub_u32 s{sCt}, s{sCt}, 1
        """)
    lpP, lpN, spec, bk, nsp1 = k.label("aP"), k.label("aN"), k.label("spec"), k.label("bk"), k.label("nsp1")
    stamp(k)
    k(f"s_mov_b32 s{sCt}, 8")
    k(f"s_cmp_lg_u32 s{sLY}, 0")
    k(f"s_cbranch_scc1 {lpN}")
    k(f"{lpP}:")
    body(True)
    k(f"s_cmp_gt_u32 s{sCt}, 4")
    k(f"s_cbranch_scc1 {lpP}")
    k(f"s_cmp_lg_u32 s{sWV}, 0")
    k(f"s_cbranch_scc1 {lpN}")
    k(f"v_and_b32 v240, 31, v{vLane}")
    k(f"v_lshlrev_b32 v240, 2, v240")
    for i in range(4): k(f"ds_read_b32 v{244+i}, v240 offset:{0x4000 + 128*i}")
    k("s_waitcnt lgkmcnt(0)")
    for i in range(1, 4): k(f"v_add_f32 v244, v244, v{244+i}")
    k(f"v_cmp_gt_u32 vcc, 32, v{vLane}")
    k.nop(2)
    k("v_cndmask_b32 v244, 0, v244, vcc")
    split3_pack(k, 244, 245, 246, 240, "A")
    k(f"buffer_store_dwordx4 v[240:243], v{vL0}, {S4(SG)}, s{sCorr} offen sc1")
    for _ in range(CFG.get("apad", 0)): k("s_nop 0")
    k(f"{lpN}:")
    body(False)
    k(f"s_cmp_gt_u32 s{sCt}, 3")
    k(f"s_cbranch_scc1 {lpN}")
    k(f"s_cmp_lg_u32 s{sCt}, 0")
    k(f"s_cbranch_scc1 {spec}")
    xl = f"buffer_load_dword v240, v241, {S4(SG)}, s88 offen sc1"
    wl = f"buffer_load_dwordx4 v[244:247], v{vL0}, {S4(SG)}, s89 offen sc1"
    sp5, sp6 = k.label("sp5"), k.label("sp6")
    cold2 = K("main_cold2"); cold.uid = 5000
    cold(f"{spec}:")
    cold(f"s_cmp_eq_u32 s{sCt}, 2")
    cold(f"s_cbranch_scc1 {sp5}")
    cold(f"s_cmp_eq_u32 s{sCt}, 1")
    cold(f"s_cbranch_scc1 {sp6}")
    cold("s_mov_b64 exec, 1")
    cold(f"buffer_store_dword v{vOne}, off, {S4(SG)}, s{sSp2} sc1")
    cold("s_mov_b64 exec, -1")
    if CFG.get("two", 1): touch_set(cold, WO, 128 * KB, 128 * KB, 0)
    if CFG.get("tox", 1):
        cold(f"v_and_b32 v{vT2}, 0xf80, v{vTch}")
        cold(f"v_lshrrev_b32 v241, 5, v{vLane}")
        cold(f"v_lshlrev_b32 v241, 22, v241")
        cold(f"v_add_u32 v{vT2}, v{vT2}, v241")
        assert XMID - OF == 1 << 22
        tile_off(cold, sT2, OF)
    cold(f"s_branch {lpN}")
    cold(f"{sp5}:")
    if CFG.get("two", 1): touch_set(cold, WO, 128 * KB, 128 * KB, 1)
    if CFG.get("tox", 1):
        cold(f"v_and_b32 v{vT2}, 0x80, v{vTch}")
        stat_off(cold, sT2, STMID)
    cold(f"""
    v_and_b32 v241, 15, v{vLane}
    v_lshlrev_b32 v241, 2, v241
    s_lshl_b32 s88, s{sMT}, 7
    s_add_u32 s88, s88, {XCC}
    s_mov_b32 s89, {WPF}
    """)
    cold(xl); cold(wl)
    cold(f"s_branch {lpN}")
    cold(f"{sp6}:")
    spin_check(cold, xl, [240], 4, cold2)
    cold(f"v_cmp_ne_u32 vcc, s{sXCC}, v240")
    cold(f"s_cmp_lg_u64 vcc, 0")
    cold(f"s_cselect_b32 s{sMODE}, 1, {1 if FORCE_SAFE else 0}")
    spin_check(cold, wl, [244, 245, 246, 247], 4, cold2)
    if CFG.get("tw1", 1): touch_set(cold, WT + T1, TS, 64 * KB, 0)
    cold(f"s_branch {lpN}")
    cold.lines += cold2.lines
    stamp(k)
    k(f"v_mfma_f32_32x32x16_bf16 {vr(Or+16,16)}, {vr(VBUF+8+4,4)}, {vr(Pr+4,4)}, {vr(Or+16,16)}")
    k(f"v_mfma_f32_16x16x32_bf16 {vr(Lr+4,4)}, {ar(aON,4)}, {vr(Pr+4,4)}, {vr(Lr+4,4)}")
    k(f"""
    s_mov_b32 s{sPsz}, 0
    s_mov_b32 s{sSp2}, {OOB}
    s_waitcnt vmcnt(0) lgkmcnt(0)
    s_barrier
    """)
    k.nop(8)
    fin, slow = k.label("fin"), k.label("slow")
    k(f"v_add_f32 v6, v{Lr}, v{Lr+4}")
    for i in range(32): k(f"v_fma_f32 v6, 0, v{Or+i}, v6")
    k(f"""
    v_mov_b32 v5, {f32(2.0**100)}
    v_cmp_nle_f32 vcc, v6, v5
    s_cmp_lg_u64 vcc, 0
    s_cbranch_scc1 {slow}
    {fin}:
    v_rcp_f32 v5, v{Lr}
    v_rcp_f32 v6, v{Lr+4}
    s_lshl_b32 s85, s{sTB}, 16
    s_lshl_b32 s33, s{sNT}, 12
    s_add_u32 s85, s85, s33
    s_add_u32 s85, s85, {OF}
    """)
    for i in range(32): k(f"v_mul_f32 v{Or+i}, v{Or+i}, v{5 + i//16}")
    for i in range(16): k(f"v_cvt_pk_bf16_f32 v{S0+i}, v{Or+2*i}, v{Or+2*i+1}")
    for q in range(4): k(f"buffer_store_dwordx4 {vr(S0+4*q,4)}, v{vL0}, {S4(SR)}, s85 offen offset:{1024*q}")
    c = cold
    c(f"{slow}:")
    vm, va = 240, 242
    for i in range(32): c(f"v_mov_b32 v{Or+i}, 0")
    for i in range(8): c(f"v_mov_b32 v{Lr+i}, 0")
    c(f"v_mov_b32 v{vm}, 0xff800000")
    c(f"v_mov_b32 v{vm+1}, 0xff800000")
    c(f"s_mov_b32 s{sWo}, 0")
    sl = k.label("sloop")
    c(f"{sl}:")
    for f in range(4):
        d = KBUF + 4 * f if f < 2 else VBUF + 4 * (f - 2)
        c(f"buffer_load_dwordx4 {vr(d,4)}, v{vL0}, {S4(SW)}, s{sWo} offen offset:{1024*f} sc1")
    c("s_waitcnt vmcnt(0)")
    for qt in range(2):
        O_, L_ = Or + 16 * qt, Lr + 4 * qt
        c(f"v_mfma_f32_32x32x16_bf16 {vr(S0,16)}, {vr(KBUF,4)}, {vr(Qr+8*qt,4)}, 0")
        c(f"v_mfma_f32_32x32x16_bf16 {vr(S0,16)}, {vr(KBUF+4,4)}, {vr(Qr+8*qt+4,4)}, {vr(S0,16)}")
        c.nop(12)
        tile_max(c, 6, S0, 5)
        c(f"""
        v_max_f32 v6, v6, v{vm+qt}
        v_sub_f32 v{va}, v{vm+qt}, v6
        v_exp_f32 v{va}, v{va}
        v_mov_b32 v{vm+qt}, v6
        """)
        for i in range(16): c(f"v_sub_f32 v{S0+i}, v{S0+i}, v6")
        for i in range(16): c(f"v_exp_f32 v{S0+i}, v{S0+i}")
        for i in range(16): c(f"v_mul_f32 v{O_+i}, v{O_+i}, v{va}")
        for i in range(4): c(f"v_mul_f32 v{L_+i}, v{L_+i}, v{va}")
        for i in range(8): c(f"v_cvt_pk_bf16_f32 v{Pr+i}, v{S0+2*i}, v{S0+2*i+1}")
        c.nop(2)
        for f in range(2):
            c(f"v_mfma_f32_32x32x16_bf16 {vr(O_,16)}, {vr(VBUF+4*f,4)}, {vr(Pr+4*f,4)}, {vr(O_,16)}")
            c(f"v_mfma_f32_16x16x32_bf16 {vr(L_,4)}, {ar(aON,4)}, {vr(Pr+4*f,4)}, {vr(L_,4)}")
        c.nop(12)
    c(f"""
    s_add_u32 s{sWo}, s{sWo}, 4096
    s_cmp_lt_u32 s{sWo}, {256*KB}
    s_cbranch_scc1 {sl}
    """)
    c(f"s_branch {fin}")
    resident_setup(k, WO, 17)
    handoff(k, cold, resident_w_pieces(), CFG["n1"], CFG.get("wo_n2", 20), F_O, F_O, vPoll, 240)
    acc, wf, pk = 8, 40, 72
    k(f"s_lshl_b32 s{sAo}, s{sTB}, 16")
    k(f"s_add_u32 s{sAo}, s{sAo}, {OF}")
    ABo = CFG.get("wo_AB", 16)
    for t in range(ABo): act_ld(k, 4 * t, t)
    k(f"s_waitcnt vmcnt({ABo})")
    k("s_barrier")
    def lateB(k):
        n = 0
        if CFG.get("e3", 0): n += wtouch(k, T1 + 64 * KB, CFG["e3"] * 64 * KB)
        if CFG.get("e3h", 0): n += htouch(k)
        return n
    resident_loop(k, acc, wf, 0, ABo, late=lateB)
    residual(k, acc)
    k("s_barrier")
    x_epilogue(k, acc, pk, XMID, STMID)
    acc, wf, vst, bc, tmp = 8, 120, 152, 168, 172
    r1 = Ring(7, 4, 4, 16, CFG.get("f1_AB", 8), 7, acc, wf, 0)
    aC1 = 64
    r1.setup_w(k, T1, TS)
    cp = [[("txt", f"s_mul_i32 s34, s{sNT}, {7*KB}"), ("txt", f"s_add_u32 s34, s34, {C1}")]]
    for nb in range(7):
        o = []
        if nb == 4: o.append(("txt", "s_add_u32 s34, s34, 4096"))
        o.append(("vm", ("X", nb), f"buffer_load_dwordx4 {ar(aC1+4*nb,4)}, v{vL0}, {S4(SG)}, s34 offen offset:{1024*(nb%4)}"))
        cp.append(o)
    handoff(k, cold, r1.wpro + cp, CFG["n1"], CFG["f1_n2"], F_XMID, F_XMID, vPoll, 240)
    stats_issue(k, STMID, vst, 7)
    k(f"s_lshl_b32 s33, s{sTB}, 16")
    k(f"s_add_u32 s33, s33, {XMID}")
    srd_off(k, SA, SR, "s33", 64 * KB)
    k(f"s_mov_b32 s{sAo}, 0")
    def pro1(k, n):
        for i in range(112): k(f"v_mov_b32 v{acc+i}, 0")
        k(f"s_waitcnt vmcnt({n})")
        stats_finish(k, vst, vmean, vrs)
        k(f"v_mul_f32 v{vrs}, {f32(-LOG2E)}, v{vrs}")
        k(f"v_mov_b32 v{vrs+1}, v{vrs}")
        split3_pack(k, vmean, vst, vst + 1, bc, "B")
    r1.main(k, pro1, cold, (CFG["e4"], htouch) if CFG.get("e4", 0) else None)
    for nb in range(7):
        a = acc + 16 * nb
        k(f"v_mfma_f32_32x32x16_bf16 {vr(a,16)}, {ar(aC1+4*nb,4)}, {vr(bc,4)}, {vr(a,16)}")
    for pc in r1.wtail: emit_items(k, pc)
    k("s_waitcnt lgkmcnt(0)")
    k("s_barrier")
    r2 = Ring(4, 4, 7, 28, CFG["f2_AB"], 7, 8, 72, 0)
    k(f"s_cmp_eq_u32 s{sLY}, 0")
    k(f"s_cselect_b32 s32, {576*KB}, {448*KB}" if False else f"s_cselect_b32 s32, 9, 7")
    k(f"s_lshl_b32 s32, s32, 16")
    r2.setup_w(k, T2, "s32", stage0=5)
    for pc in r2.wlast: emit_items(k, pc)
    if CFG.get("e1h", 0): htouch(k)
    if CFG.get("e1", 0): wtouch(k, T2 + 96 * KB, CFG["e1"] * 64 * KB)
    k(f"""
    s_mul_i32 s35, s{sTB}, {224*KB}
    s_mul_i32 s33, s{sNT}, {14*KB}
    s_add_u32 s35, s35, s33
    s_add_u32 s35, s35, {HF}
    """)
    e = tmp
    for nb in range(7):
        a = acc + 16 * nb
        p = tmp + 16 + 8 * (nb % 2)
        for i in range(8): k(f"v_pk_mul_f32 {vr(a+2*i,2)}, {vr(a+2*i,2)}, {vr(vrs,2)}")
        for i in range(16): k(f"v_exp_f32 v{e+i}, v{a+i}")
        for i in range(8): k(f"v_pk_fma_f32 {vr(e+2*i,2)}, {vr(e+2*i,2)}, s[{sL2E}:{sL2E+1}], s[{sL2E}:{sL2E+1}]")
        for i in range(16): k(f"v_rcp_f32 v{e+i}, v{e+i}")
        for i in range(8): k(f"v_pk_mul_f32 {vr(a+2*i,2)}, {vr(a+2*i,2)}, {vr(e+2*i,2)}")
        for i in range(8): k(f"v_cvt_pk_bf16_f32 v{p+i}, v{a+2*i}, v{a+2*i+1}")
        for half in range(2):
            k(f"buffer_store_dwordx4 {vr(p+4*half,4)}, v{vL0}, {S4(SR)}, s35 offen offset:{((2*nb+half)%4)*1024}")
        if nb % 2 == 1: k("s_add_u32 s35, s35, 4096")
    handoff(k, cold, [], 0, 0, F_H, F_H, vPollH, 240)
    acc, pk = 8, 104
    k(f"s_mul_i32 s33, s{sTB}, {224*KB}")
    k(f"s_and_b32 s32, s{sNT}, 1")
    k(f"s_mul_i32 s32, s32, {112*KB}")
    k(f"s_add_u32 s33, s33, s32")
    k(f"s_add_u32 s33, s33, {HF}")
    srd_off(k, SA, SR, "s33", 112 * KB)
    k(f"s_mov_b32 s{sAo}, 0")
    def pro2(k, n):
        for i in range(64): k(f"v_mov_b32 v{acc+i}, 0")
    def spec2(c):
        for p in kvw_pieces(): emit_items(c, p)
        c(f"s_mov_b32 s32, m0")
        c(f"s_add_u32 m0, s{sLw}, {112*KB}")
        c(f"s_add_u32 s33, s{sLw}, {35*16*KB}")
        for p in range(4): c(f"buffer_load_dwordx4 v{vL0}, {S4(SW)}, s33 offen offset:{1024*p} lds")
        c(f"s_mov_b32 m0, s32")
        if CFG.get("tox", 1):
            c(f"s_lshl_b32 s33, s{sTB}, 4")
            c(f"s_add_u32 s33, s33, s{sNT}")
            c(f"s_lshl_b32 s33, s33, 13")
            c(f"s_add_u32 s33, s33, {EX}")
            c(f"buffer_load_dword v{vDum}, v{vTch}, {S4(SR)}, s33 offen sc1")
            c(f"v_and_b32 v130, 0xf80, v{vTch}")
            c(f"v_and_b32 v131, 0x80, v{vTch}")
            tile_off(c, 33, RS + XIN)
            c(f"buffer_load_dword v{vDum}, v130, {S4(SR)}, s33 offen sc1")
            stat_off(c, 33, RS + STIN)
            c(f"buffer_load_dword v{vDum}, v131, {S4(SR)}, s33 offen sc1")
    r2.main(k, pro2, cold, (1, spec2))
    residual(k, acc)
    k(f"""
    s_lshl_b32 s35, s{sTB}, 4
    s_add_u32 s35, s35, s{sNT}
    s_lshl_b32 s35, s35, 13
    s_add_u32 s35, s35, {EX}
    s_add_u32 s34, s35, 4096
    s_xor_b32 s90, s35, 8192
    s_add_u32 s91, s90, 4096
    s_waitcnt lgkmcnt(0)
    """)
    for q in range(8):
        k(f"buffer_store_dwordx4 {vr(acc+32+4*q,4)}, v{vL0}, {S4(SR)}, {'s35' if q < 4 else 's34'} offen offset:{1024*(q%4)}")
    k("s_barrier")
    handoff(k, cold, r2.wtail, 2, 2, F_E, F_E, vPollE, 240)
    for q in range(8):
        k(f"buffer_load_dwordx4 {vr(acc+32+4*q,4)}, v{vL0}, {S4(SR)}, {'s90' if q < 4 else 's91'} offen offset:{1024*(q%4)}{LD}")
    for q in range(8):
        k(f"s_waitcnt vmcnt({7-q})")
        for i in range(2): k(f"v_pk_add_f32 {vr(acc+4*q+2*i,2)}, {vr(acc+4*q+2*i,2)}, {vr(acc+32+4*q+2*i,2)}")
    stamp(k)
    final = k.label("final")
    k(f"s_cmp_lg_u32 s{sLY}, 0")
    k(f"s_cbranch_scc1 {final}")
    x_epilogue(k, acc, pk, RS + XIN, RS + STIN)
    handoff(k, cold, r2.dma_ops(34, slot=6), CFG.get("y_n1", 4), CFG.get("y_n1", 4), RS + F_XIN, RS + F_XIN, vPollA, 240)
    k(f"""
    s_add_u32 s{SR}, s{SR}, {RS}
    s_addc_u32 s{SR+1}, s{SR+1}, 0
    s_mov_b32 s{sLY}, 1
    s_branch {layer}
    {final}:
    """)
    srd(k, SA, "s6", "s7", 2048 * 2048)
    k(f"""
    v_and_b32 v5, 31, v{vLane}
    v_lshrrev_b32 v6, 5, v{vLane}
    v_lshlrev_b32 v5, 11, v5
    v_lshl_add_u32 v5, v6, 4, v5
    s_lshl_b32 s35, s{sTB}, 16
    s_lshl_b32 s33, s{sNT}, 7
    s_add_u32 s35, s35, s33
    """)
    k.nop(2)
    for i in range(16): k(f"v_cvt_pk_bf16_f32 v{pk+i}, v{acc+2*i}, v{acc+2*i+1}")
    k.nop(2)
    for q in range(4):
        b = pk + 4 * q
        k(f"v_permlane32_swap_b32 v{b}, v{b+2}")
        k(f"v_permlane32_swap_b32 v{b+1}, v{b+3}")
    for q in range(4):
        k(f"buffer_store_dwordx4 {vr(pk+4*q,4)}, v5, {S4(SA)}, s35 offen offset:{32*q}")
    if PROF:
        k("s_waitcnt vmcnt(0)")
        stamp(k)
        k("s_memrealtime s[70:71]")
        k("s_waitcnt lgkmcnt(0)")
        k("v_writelane_b32 v255, s70, 63")
        k(f"v_writelane_b32 v255, s{sMODE}, 62")
        srd(k, SA, "s4", "s5", WS_SIZE)
        k(f"""
        s_lshl_b32 s33, s2, 2
        s_add_u32 s33, s33, s{sWV}
        s_lshl_b32 s33, s33, 8
        s_add_u32 s33, s33, {PROFB}
        v_lshlrev_b32 v5, 2, v{vLane}
        buffer_store_dword v255, v5, {S4(SA)}, s33 offen
        """)
    k(f"{end}:")
    k("s_endpgm")
    k.lines += cold.lines
    return k, dict(grid=256, block=256, lds=160 * KB, vgpr=512, accum=256)

def build():
    km = gen_main()
    code_kb = 48
    kern = {}
    for k, m in (gen_prep(code_kb), km): kern[k.name] = (k, m)
    order = ["prep_kernel", "main_kernel"]
    out = ["; interleaved MQA attention + SiLU FFN, 2 layers; emitted by gen/gen3.py (own generator)"]
    for n in order:
        m = kern[n][1]
        out.append(f"; @launch kernel={n} grid=({m['grid']},1,1) block=({m['block']},1,1) lds={m['lds']}")
    out.append('.amdgcn_target "amdgcn-amd-amdhsa--gfx950"')
    out.append(".text")
    errs = []
    for n, (k, m) in kern.items():
        errs += check_hazards(k.lines, n)
        out += [f".globl {n}", ".p2align 8", f".type {n},@function", f"{n}:", k.text()]
    out.append("Lcode_end:")
    out.append(f".fill (({code_kb * 1024} - (Lcode_end - main_kernel)) / 4), 4, 0xbf800000")
    out.append('.section .rodata,"a"')
    for n, (k, m) in kern.items():
        out.append(kernel_desc(n, m["vgpr"], m["accum"]))
    return "\n".join(out) + "\n", errs

if __name__ == "__main__":
    txt, errs = build()
    for e in errs: print("HAZARD", e)
    dst = sys.argv[1] if len(sys.argv) > 1 else "k3.s"
    open(dst, "w").write(txt)
    print("wrote", dst, len(txt), "bytes;", len(errs), "hazards")
```

```python
import sys, os, struct
sys.path.insert(0, os.path.dirname(os.path.abspath(__file__)))
from asmlib import *

KB = 1024
CQ, C1, WPF, XCC, WKV, WO, WT = 0x0, 0x10000, 0x30000, 0x31000, 0x40000, 0x200000, 0x400000
TS = 0x100000
T1, T2, TQ = 0, 448 * KB, 896 * KB
GS = 0x1400000
RS = 0x2800000
XIN, OF, XMID, KV, STIN, STMID, FLG, HF, EX = 0x0, 0x400000, 0x800000, 0xC00000, 0xC40000, 0xC80000, 0xCC0000, 0x1000000, 0x1E00000
F_XIN, F_O, F_XMID, F_H, F_E = [FLG + 8192 * i for i in range(5)]
KVF = FLG + 40960
FLG_KB = 44
WS_SIZE = 0x10000000
OOB = 0x7ff00000
A_X, A_WQ, A_WK, A_WV, A_WO, A_BX, A_W1, A_W2, A_OUT, A_DBG, A_WS = [8 * i for i in range(11)]
LOG2E = 1.4426950408889634
def f32(x): return "0x%08x" % struct.unpack("<I", struct.pack("<f", x))[0]
PROF = os.environ.get("PROF") == "1"
FORCE_SAFE = os.environ.get("SAFE") == "1"
PROFB = 0x8000000
SPIN = 1 << 18

CFG = dict(n1=8, f1_n2=14, f2_AB=14)
for kv in os.environ.get("CFG", "").split(","):
    if "=" in kv:
        a, b = kv.split("="); CFG[a] = int(b)

LD = " sc1" if CFG.get("ldsc1", 1) else ""
sWS, sOUT = 4, 6
SA, SW, SR, SG, SP, SD = 8, 12, 16, 20, 24, 36
sAo, sWo, sLw, sCt = 28, 29, 30, 31
sMT, sNT, sWV, sTB, sLY, sMODE, sSEL = 52, 53, 54, 55, 56, 57, 58
sG1 = 60
sPs, sPss, sPd, sPds, sCorr, sSp1, sSp2, sPsz, sDsz = 61, 62, 63, 64, 65, 66, 67, 74, 75
sL2E = 68
sKVr, sKVf = 76, 77
sCur, sNxt, sDst, sXCC = 78, 79, 80, 81
sTBs = 82
sPlim, sAn, sAe, sJl = 44, 45, 46, 47
sTF, sNF, sJ, sOWN, sJmp, sFX = 94, 95, 40, 41, 42, 43
vLane, vL0, vL1, vL2, vPoll, vPollA, vOne = 2, 3, 4, 242, 250, 251, 252
vPk, vTr = 243, 254
vTch, vDum = 249, 248
vPollH, vPollX = 1, 0
sXS = 86

sTch = 92
def touch_set(k, base, tile_bytes, nbytes, i):
    per = nbytes // 8
    k(f"s_mul_i32 s{sTch}, s{sNT}, {tile_bytes}")
    k(f"s_mul_i32 s32, s{sXS}, {per}")
    k(f"s_add_u32 s{sTch}, s{sTch}, s32")
    k(f"s_add_u32 s{sTch}, s{sTch}, {base + i * 8192}")
sT2, vT2 = 93, 107
def wtouch(k, off, nbytes):
    per = nbytes // 8
    k(f"s_lshl_b32 s33, s{sNT}, 20")
    k(f"s_mul_i32 s32, s{sXS}, {per}")
    k(f"s_add_u32 s33, s33, s32")
    k(f"s_add_u32 s33, s33, {WT + off}")
    for i in range(per // 8192):
        if i: k("s_add_u32 s33, s33, 8192")
        k(f"buffer_load_dword v{vDum}, v{vTch}, {S4(SG)}, s33 offen")
    return per // 8192
def tile_off(k, d, base):
    k(f"s_lshl_b32 s{d}, s{sTB}, 16")
    k(f"s_lshl_b32 s32, s{sNT}, 12")
    k(f"s_add_u32 s{d}, s{d}, s32")
    if base: k(f"s_add_u32 s{d}, s{d}, {base}")
def stat_off(k, d, base):
    k(f"s_lshl_b32 s{d}, s{sNT}, 14")
    k(f"s_lshl_b32 s32, s{sTB}, 8")
    k(f"s_add_u32 s{d}, s{d}, s32")
    k(f"s_add_u32 s{d}, s{d}, {base}")
def htouch(k):
    k(f"s_mul_i32 s33, s{sTF}, {224*KB}")
    k(f"s_mul_i32 s32, s{sNF}, {14*KB}")
    k(f"s_add_u32 s33, s33, s32")
    k(f"s_add_u32 s33, s33, {HF}")
    k(f"buffer_load_dword v{vDum}, v{vTch}, {S4(SR)}, s33 offen sc1")
    k(f"s_add_u32 s33, s33, {6*KB}")
    k(f"buffer_load_dword v{vDum}, v{vTch}, {S4(SR)}, s33 offen sc1")
    return 2
aX, aID, aON = 228, 244, 252

S4 = lambda d: f"s[{d}:{d+3}]"
def srd(k, d, lo, hi, size):
    if lo != f"s{d}": k(f"s_mov_b32 s{d}, {lo}")
    if hi != f"s{d+1}": k(f"s_mov_b32 s{d+1}, {hi}")
    k(f"s_mov_b32 s{d+2}, {size}")
    k(f"s_mov_b32 s{d+3}, 0x20000")

def srd_off(k, d, base, off, size):
    k(f"s_add_u32 s{d}, s{base}, {off}")
    k(f"s_addc_u32 s{d+1}, s{base+1}, 0")
    k(f"s_mov_b32 s{d+2}, {size}")
    k(f"s_mov_b32 s{d+3}, 0x20000")

def stamp(k):
    if not PROF: return
    k("s_memtime s[70:71]")
    k("s_waitcnt lgkmcnt(0)")
    k("s_mov_b32 s73, m0")
    k("s_mov_b32 m0, s72")
    k("s_nop 0")
    k("v_writelane_b32 v255, s70, m0")
    k("s_mov_b32 m0, s73")
    k("s_add_u32 s72, s72, 1")

def split3_pack(k, src, t1, t2, out, side):
    k(f"""
    v_and_b32 v{t1}, 0xffff0000, v{src}
    v_sub_f32 v{t1}, v{src}, v{t1}
    v_and_b32 v{t2}, 0xffff0000, v{t1}
    v_sub_f32 v{t2}, v{t1}, v{t2}
    """)
    p1, p2, p3 = src, t1, t2
    pk = lambda d, lo, hi: k(f"v_perm_b32 v{d}, v{hi}, v{lo}, s{sSEL}")
    if side == "A":
        pk(out, p1, p2); pk(out + 1, p1, p2); pk(out + 2, p3, p1)
    else:
        pk(out, p1, p1); pk(out + 1, p2, p2); pk(out + 2, p1, p3)
    k(f"v_mov_b32 v{out+3}, 0")

def tr_addr(k, d, t):
    k(f"""
    v_lshrrev_b32 v{d}, 5, v{vLane}
    v_bfe_u32 v{t}, v{vLane}, 2, 2
    v_lshl_add_u32 v{d}, v{d}, 2, v{t}
    v_lshlrev_b32 v{d}, 6, v{d}
    v_bfe_u32 v{t}, v{vLane}, 4, 1
    v_lshl_add_u32 v{d}, v{t}, 5, v{d}
    v_and_b32 v{t}, 3, v{vLane}
    v_lshl_add_u32 v{d}, v{t}, 3, v{d}
    """)

NS, NX, NP = 40, 128, 264
def gen_prep(code_kb):
    k = K("prep_kernel")
    tot = NS + NX + NP
    end = k.label("end")
    R0 = GS
    def pst(i):
        if PROF: k(f"s_memrealtime s[{70+2*i}:{71+2*i}]")
    def pend():
        if not PROF: return
        k("s_waitcnt vmcnt(0)")
        pst(3)
        k(f"""
        s_waitcnt lgkmcnt(0)
        v_mov_b32 v8, s70
        v_mov_b32 v9, s72
        v_mov_b32 v10, s74
        v_mov_b32 v11, s76
        s_lshl_b32 s60, s2, 3
        s_add_u32 s60, s60, s26
        s_lshl_b32 s60, s60, 4
        s_add_u32 s60, s60, {PROFB + 0x100000}
        s_mov_b64 exec, 1
        buffer_store_dwordx4 v[8:11], off, s[16:19], s60
        """)
    pst(0)
    k(f"""
    s_cmp_ge_u32 s2, {tot}
    s_cbranch_scc1 {end}
    s_load_dwordx2 s[4:5], s[0:1], {A_WS}
    s_load_dwordx4 s[36:39], s[0:1], {A_X}
    s_load_dwordx4 s[40:43], s[0:1], {A_WK}
    s_load_dwordx2 s[48:49], s[0:1], {A_WO}
    v_lshrrev_b32 v1, 6, v0
    v_and_b32 v2, 63, v0
    v_readfirstlane_b32 s26, v1
    v_lshlrev_b32 v3, 4, v2
    s_mov_b32 s{sSEL}, 0x07060302
    s_mov_b32 s11, 0x20000
    s_waitcnt lgkmcnt(0)
    """)
    pst(1)
    srd(k, 16, "s4", "s5", WS_SIZE)
    lS, lP = k.label("S"), k.label("P")
    k(f"s_cmp_lt_u32 s2, {NS}")
    k(f"s_cbranch_scc1 {lS}")
    k(f"s_cmp_ge_u32 s2, {NS+NX}")
    k(f"s_cbranch_scc1 {lP}")
    k(f"""
    s_mov_b32 s8, s36
    s_mov_b32 s9, s37
    s_mov_b32 s10, {2048*2048}
    s_sub_u32 s23, s2, {NS}
    s_and_b32 s24, s23, 7
    s_lshl_b32 s24, s24, 4
    s_lshr_b32 s25, s23, 3
    s_add_u32 s24, s24, s25
    s_lshl_b32 s24, s24, 3
    s_add_u32 s24, s24, s26
    s_lshr_b32 s27, s24, 4
    s_and_b32 s25, s24, 15
    v_and_b32 v4, 31, v2
    v_lshrrev_b32 v5, 5, v2
    v_lshlrev_b32 v6, 11, v4
    v_lshl_add_u32 v6, v5, 4, v6
    s_lshl_b32 s28, s27, 16
    s_lshl_b32 s29, s25, 7
    s_add_u32 s28, s28, s29
    """)
    for q in range(4):
        k(f"buffer_load_dwordx4 v[{8+4*q}:{11+4*q}], v6, s[8:11], s28 offen offset:{32*q}")
    nc = k.label("nc")
    k(f"""
    s_lshr_b32 s44, s23, 3
    s_lshl_b32 s44, s44, 3
    s_add_u32 s44, s44, s26
    s_cmp_ge_u32 s44, {code_kb}
    s_cbranch_scc1 {nc}
    s_getpc_b64 s[46:47]
    Lpc_prep:
    s_add_u32 s46, s46, main_kernel-Lpc_prep
    s_addc_u32 s47, s47, 0
    s_lshl_b32 s44, s44, 10
    v_add_u32 v30, s44, v3
    global_load_dwordx4 v[32:35], v30, s[46:47]
    {nc}:
    v_mov_b32 v36, 0
    v_mov_b32 v37, 0
    v_mov_b32 v38, 0
    v_mov_b32 v39, 0
    s_lshl_b32 s44, s24, 10
    s_add_u32 s45, s44, {R0 + FLG}
    s_add_u32 s46, s44, {R0 + RS + FLG - FLG_KB*KB}
    s_cmp_lt_u32 s24, {FLG_KB}
    s_cselect_b32 s45, s45, s46
    s_add_u32 s46, s44, {WPF - 2*FLG_KB*KB}
    s_cmp_lt_u32 s24, {2*FLG_KB}
    s_cselect_b32 s45, s45, s46
    s_cmp_lt_u32 s24, {2*FLG_KB+8}
    s_cselect_b32 s45, s45, {OOB}
    buffer_store_dwordx4 v[36:39], v3, s[16:19], s45 offen
    v_mov_b32 v24, 0
    v_mov_b32 v25, 0
    v_mov_b32 v26, 0x3f803f80
    s_lshl_b32 s28, s27, 16
    s_lshl_b32 s29, s25, 12
    s_add_u32 s28, s28, s29
    s_add_u32 s28, s28, {R0 + XIN}
    s_lshl_b32 s30, s25, 14
    s_lshl_b32 s31, s27, 8
    s_add_u32 s30, s30, s31
    s_add_u32 s30, s30, {R0 + STIN}
    v_lshlrev_b32 v7, 3, v4
    s_waitcnt vmcnt(1)
    """)
    pst(2)
    for i in range(16):
        k(f"v_dot2_f32_bf16 v24, v{8+i}, v26, v24")
        k(f"v_dot2_f32_bf16 v25, v{8+i}, v{8+i}, v25")
    for q in range(4):
        b = 8 + 4 * q
        k(f"v_permlane32_swap_b32 v{b}, v{b+2}")
        k(f"v_permlane32_swap_b32 v{b+1}, v{b+3}")
    for q in range(4):
        k(f"buffer_store_dwordx4 v[{8+4*q}:{11+4*q}], v3, s[16:19], s28 offen offset:{1024*q}")
    k("v_mov_b32 v27, v24")
    k("v_mov_b32 v28, v25")
    k.nop(2)
    k("v_permlane32_swap_b32 v24, v27")
    k("v_permlane32_swap_b32 v25, v28")
    k.nop(1)
    k("v_add_f32 v24, v24, v27")
    k("v_add_f32 v25, v25, v28")
    k("buffer_store_dwordx2 v[24:25], v7, s[16:19], s30 offen")
    pend()
    k("s_endpgm")
    def src_voff():
        k("""
        v_lshrrev_b32 v4, 2, v2
        v_mul_lo_u32 v4, v4, s28
        v_and_b32 v5, 3, v2
        v_lshl_add_u32 v4, v5, 4, v4
        s_lshl_b32 s27, s26, 13
        """)
    k(f"{lP}:")
    pkv, pj = k.label("pkv"), k.label("pj")
    k(f"""
    s_sub_u32 s23, s2, {NS+NX}
    s_cmp_ge_u32 s23, 256
    s_cbranch_scc1 {pkv}
    s_cmp_ge_u32 s23, 128
    s_cselect_b32 s8, s48, s38
    s_cselect_b32 s9, s49, s39
    s_cselect_b32 s50, 17, 20
    s_cselect_b32 s51, {WO >> 16}, {(WT + TQ) >> 16}
    s_lshl_b32 s51, s51, 16
    s_mov_b32 s10, {1024*2048}
    s_mov_b32 s28, 2048
    s_and_b32 s23, s23, 127
    s_lshr_b32 s29, s23, 3
    s_and_b32 s30, s23, 7
    s_lshl_b32 s30, s30, 3
    s_add_u32 s30, s30, s26
    s_lshl_b32 s24, s30, 15
    s_lshl_b32 s25, s29, 7
    s_add_u32 s24, s24, s25
    s_mov_b32 s25, 64
    s_lshl_b32 s31, s29, s50
    s_add_u32 s31, s31, s51
    s_lshl_b32 s30, s30, 11
    s_add_u32 s31, s31, s30
    s_branch {pj}
    {pkv}:
    s_cmp_lt_u32 s23, 260
    s_cselect_b32 s8, s40, s42
    s_cselect_b32 s9, s41, s43
    s_mov_b32 s10, {1024*64}
    s_mov_b32 s28, 64
    s_sub_u32 s23, s23, 256
    s_lshl_b32 s31, s23, 3
    s_add_u32 s31, s31, s26
    s_lshl_b32 s31, s31, 11
    s_and_b32 s24, s31, 0xffff
    s_add_u32 s31, s31, {WKV}
    s_mov_b32 s25, 1024
    {pj}:
    """)
    src_voff()
    k(f"""
    s_mov_b32 m0, s27
    s_add_u32 s25, s24, s25
    buffer_load_dwordx4 v4, s[8:11], s24 offen lds
    s_add_u32 m0, s27, 1024
    s_nop 0
    buffer_load_dwordx4 v4, s[8:11], s25 offen lds
    """)
    tr_addr(k, 5, 6)
    k("v_add_u32 v5, s27, v5")
    k("s_waitcnt vmcnt(0)")
    pst(2)
    for i in range(2):
        k(f"ds_read_b64_tr_b16 v[{8+4*i}:{9+4*i}], v5 offset:{1024*i}")
        k(f"ds_read_b64_tr_b16 v[{10+4*i}:{11+4*i}], v5 offset:{1024*i+512}")
    k("s_waitcnt lgkmcnt(0)")
    for i in range(2):
        k(f"buffer_store_dwordx4 v[{8+4*i}:{11+4*i}], v3, s[16:19], s31 offen offset:{1024*i}")
    pend()
    k("s_endpgm")
    k(f"{lS}:")
    join, lkv = k.label("join"), k.label("kv")
    k(f"""
    s_cmp_ge_u32 s2, 34
    s_cbranch_scc1 {end}
    s_lshl_b32 s30, s26, 3
    s_cmp_ge_u32 s2, 32
    s_cbranch_scc1 {lkv}
    s_mov_b32 s8, s38
    s_mov_b32 s9, s39
    s_mov_b32 s10, {1024*2048}
    s_mov_b32 s28, 2048
    s_and_b32 s35, s2, 7
    s_lshl_b32 s35, s35, 2
    s_lshr_b32 s29, s2, 3
    s_add_u32 s29, s29, s35
    s_lshl_b32 s33, s29, 10
    s_branch {join}
    {lkv}:
    s_cmp_eq_u32 s2, 32
    s_cselect_b32 s8, s40, s42
    s_cselect_b32 s9, s41, s43
    s_lshl_b32 s33, s2, 10
    s_mov_b32 s10, {1024*64}
    s_mov_b32 s28, 64
    s_mov_b32 s29, 0
    {join}:
    """)
    assert CQ == 0
    src_voff()
    k(f"""
    s_lshl_b32 s28, s28, 4
    s_mul_i32 s24, s30, s28
    s_lshl_b32 s25, s29, 6
    s_add_u32 s24, s24, s25
    """)
    for i in range(8):
        k(f"s_add_u32 m0, s27, {1024*i}")
        k("s_nop 0")
        k(f"buffer_load_dwordx4 v4, s[8:11], s24 offen lds")
        k(f"s_add_u32 s24, s24, s28")
    tr_addr(k, 5, 6)
    k(f"""
    v_add_u32 v5, s27, v5
    v_mov_b32 v60, 0x3f803f80
    v_mov_b32 v61, 0x3f803f80
    v_mov_b32 v62, 0x3f803f80
    v_mov_b32 v63, 0x3f803f80
    s_waitcnt vmcnt(0)
    """)
    pst(2)
    for i in range(8):
        k(f"ds_read_b64_tr_b16 v[{8+4*i}:{9+4*i}], v5 offset:{1024*i}")
        k(f"ds_read_b64_tr_b16 v[{10+4*i}:{11+4*i}], v5 offset:{1024*i+512}")
        if i == 3: k("s_waitcnt lgkmcnt(0)")
    k("s_waitcnt lgkmcnt(0)")
    for i in range(8):
        k(f"v_mfma_f32_32x32x16_bf16 v[40:55], v[60:63], v[{8+4*i}:{11+4*i}], {'0' if i == 0 else 'v[40:55]'}")
    k(f"""
    v_and_b32 v5, 31, v2
    v_lshlrev_b32 v5, 2, v5
    v_add_u32 v5, 0x10000, v5
    s_lshl_b32 s24, s26, 7
    v_add_u32 v6, s24, v5
    """)
    k.nop(12)
    k(f"""
    ds_write_b32 v6, v40
    s_waitcnt lgkmcnt(0)
    s_barrier
    s_cmp_lg_u32 s26, 0
    s_cbranch_scc1 {end}
    """)
    for i in range(8):
        k(f"ds_read_b32 v{8+i}, v5 offset:{128*i}")
    k("s_waitcnt lgkmcnt(0)")
    for i in range(1, 8):
        k(f"v_add_f32 v8, v8, v{8+i}")
    k("v_cmp_gt_u32 vcc, 32, v2")
    k.nop(2)
    k("v_cndmask_b32 v8, 0, v8, vcc")
    split3_pack(k, 8, 9, 10, 12, "A")
    k("buffer_store_dwordx4 v[12:15], v3, s[16:19], s33 offen")
    pend()
    k(f"{end}:")
    k("s_endpgm")
    return k, dict(grid=tot, block=512, lds=65536 + 1024, vgpr=64, accum=64)

def emit_items(k, items):
    for x in items: k(x[-1])
def nvm(items): return len([x for x in items if x[0] == "vm"])

def dbg_skip(x, key):
    if key != "b1": return False
    t = x[-1] if isinstance(x[-1], str) else ""
    if CFG.get("nobar") and t == "s_barrier": return True
    if CFG.get("noact") and x[0] == "vm" and x[1][0] == "A": return True
    if CFG.get("now") and x[0] == "vm" and x[1][0] == "W": return True
    if CFG.get("novw") and x[0] == "wait": return True
    if CFG.get("nolg") and t.startswith("s_waitcnt lgkm"): return True
    if CFG.get("nods") and t.startswith("ds_read"): return True
    return False
def lds_base(off):
    return (vL0, off) if off < 65536 else (vL1, off - 65536) if off < 131072 else (vL2, off - 131072)

class Ring:
    def __init__(self, NB, KS, R, NST, AB, L, acc, wf, act):
        self.__dict__.update(locals())
        self.Q = KS * NB; self.SLOT = self.Q * KB; self.P = self.Q // 4; self.RB = L + 1; self.BODY = R * self.Q
        assert self.BODY % self.RB == 0 and (R * KS) % AB == 0 and NST % R == 0 and (R * KS) % 4 == 0
        Q, P, BODY = self.Q, self.P, self.BODY
        self.sched = {}
        for s in range(R):
            q0 = s * Q + Q - L
            for p, o in enumerate(self.dma_ops(s + R - 1)):
                qq, rel = q0 + (p * Q) // P, 0
                if qq >= BODY: qq -= BODY; rel = -R
                self.sched.setdefault(qq, []).extend(
                    [(x[0], (x[1][0], x[1][1] + rel, x[1][2]), x[2]) if x[0] == "vm" else x for x in o])
        wrapped = {x[1] for lst in self.sched.values() for x in lst if x[0] == "vm" and x[1][1] == R - 2}
        self.wpro = []
        for s in range(R - 1):
            for p, o in enumerate(self.dma_ops(s)):
                if ("W", s, p) not in wrapped: self.wpro.append(o)
        self.wlast = [o for p, o in enumerate(self.dma_ops(R - 2)) if ("W", R - 2, p) not in wrapped]
        self.wtail = [o for p, o in enumerate(self.dma_ops(R - 2)) if ("W", R - 2, p) in wrapped]
    def setup_w(self, k, off, size, stage0=0):
        k(f"s_mul_i32 s{sLw}, s{sWV}, {self.P*KB}")
        k(f"s_lshl_b32 s{sWo}, s{sNF}, 20")
        k(f"s_add_u32 s{sWo}, s{sWo}, s{sLw}")
        k(f"s_add_u32 s{sWo}, s{sWo}, {WT + off + stage0*self.SLOT}")
        k(f"s_mov_b32 s{sJmp}, {self.SLOT}")
    def dma_ops(self, s, slot=None):
        out = []
        if slot is None: slot = s % self.R
        for p in range(self.P):
            o = []
            g = p // 4
            if p % 4 == 0:
                o.append(("txt", f"s_add_u32 m0, s{sLw}, {slot*self.SLOT + 4096*g}"))
                o.append(("txt", f"s_add_u32 s{sG1}, s{sWo}, {4096*g}" if g > 0 else "s_nop 0"))
            so = f"s{sWo}" if g == 0 else f"s{sG1}"
            o.append(("vm", ("W", s, p), f"buffer_load_dwordx4 v{vL0}, {S4(SG)}, {so} offen offset:{(p%4)*1024} lds"))
            if p == self.P - 1: o.append(("txt", f"s_add_u32 s{sWo}, s{sWo}, {f's{sJmp}' if s == self.R - 1 else self.SLOT}"))
            out.append(o)
        return out
    def act_load(self, lst, t):
        lst.append(("vm", ("A", t), f"buffer_load_dwordx4 {ar(self.act + 4*(t % self.AB), 4)}, v{vL0}, {S4(SA)}, s{sAo} offen offset:{(t%4)*1024}{LD}"))
        if t % 4 == 3: lst.append(("txt", f"s_add_u32 s{sAo}, s{sAo}, {0 if CFG.get('dbga') == self.NB else 4096}"))
    def dsread(self, q):
        base, off = lds_base((q % self.BODY) * KB)
        return f"ds_read_b128 {vr(self.wf + 4*(q % self.RB), 4)}, v{base} offset:{off}"
    def main(self, k, pro, extra=None):
        NB, KS, R, Q, P, L, AB, BODY, RB = self.NB, self.KS, self.R, self.Q, self.P, self.L, self.AB, self.BODY, self.RB
        apro = []
        for t in range(AB): self.act_load(apro, t)
        pro2 = [("wait", ("W", 0, P - 1)), ("txt", "s_barrier")] + [("txt", self.dsread(q)) for q in range(L)]
        def mk(first):
            body = []
            for q in range(BODY):
                t, nb = q // NB, q % NB
                if nb == 0: body.append(("wait", ("A", t)))
                body.append(("txt", f"s_waitcnt lgkmcnt({L-1})"))
                a = self.acc + 16 * nb
                body.append(("txt", f"v_mfma_f32_32x32x16_bf16 {vr(a,16)}, {vr(self.wf + 4*(q % RB), 4)}, {ar(self.act + 4*(t % AB), 4)}, {'0' if first and t == 0 else vr(a,16)}"))
                if (q + L) % Q == 0:
                    body.append(("wait", ("W", (q + L) // Q, P - 1)))
                    body.append(("txt", "s_barrier"))
                body.append(("txt", self.dsread(q + L)))
                if nb == NB - 1: self.act_load(body, t + AB)
                body += self.sched.get(q, [])
                if extra and not first: body += extra.get(q, [])
                if first: body += pro.get(q, [])
            return body
        b0, b1 = mk(True), mk(False)
        NIT = self.NST // R
        waits, issued = {}, []
        def shift(tag, it):
            if tag[0] == "S": return (tag[0], tag[1], it)
            return (tag[0], tag[1] + it * R * KS) if tag[0] == "A" else (tag[0], tag[1] + it * R, tag[2])
        def run(lst, it, key):
            for i, x in enumerate(lst):
                if x[0] == "vm": issued.append(shift(x[1], it))
                elif x[0] == "wait":
                    n = len(issued) - 1 - issued.index(shift(x[1], it))
                    waits[(key, i)] = min(waits.get((key, i), 63), n)
        run([x for o in self.wpro for x in o], 0, "w"); run(apro, 0, "a"); run(pro2, 0, "p2"); run(b0, 0, "b0")
        for it in range(1, NIT): run(b1, it, "b1")
        def emit(lst, key):
            for i, x in enumerate(lst):
                if dbg_skip(x, key): continue
                if x[0] == "wait": k(f"s_waitcnt vmcnt({waits[(key, i)]})")
                else: k(x[-1])
        emit(apro, "a")
        emit(pro2, "p2")
        stamp(k)
        emit(b0, "b0")
        lp = k.label("loop")
        k(f"s_mov_b32 s{sCt}, {NIT-1}")
        k(f"{lp}:")
        emit(b1, "b1")
        k(f"s_sub_u32 s{sCt}, s{sCt}, 1")
        k(f"s_cmp_lg_u32 s{sCt}, 0")
        k(f"s_cbranch_scc1 {lp}")
        stamp(k)

class F2:
    ARING = [4 * i for i in range(8)] + [64 + 4 * i for i in range(6)]
    STG = [32 + 4 * i for i in range(8)] + [92 + 4 * i for i in range(5)] + [204 + 4 * i for i in range(6)]
    def __init__(self, acc, wf, vw):
        self.acc, self.wf, self.vw = acc, wf, vw
        n2, first = CFG.get("stg2", 5), CFG.get("stg0", 12)
        lst = []
        for s in range(first, 28):
            lst += [(s, 3)] + ([(s, 2)] if s < first + n2 else [])
        self.staged = {sp: r for sp, r in zip(lst[:CFG.get("nstg", 0)], self.STG)}
    def base(self, k, d):
        k(f"s_lshl_b32 s{d}, s{sNF}, 20")
        k(f"s_lshl_b32 s32, s{sWV}, 12")
        k(f"s_add_u32 s{d}, s{d}, s32")
        k(f"s_add_u32 s{d}, s{d}, {WT + T2}")
    def early(self, sb, sl):
        out = []
        for s in (7, 8, 9):
            for p in range(4):
                o = []
                if p == 0: o += [("txt", f"s_add_u32 m0, s{sl}, {s*16*KB}"), ("txt", f"s_add_u32 s{sG1}, s{sb}, {s*16*KB}")]
                o.append(("vm", ("W", s, p), f"buffer_load_dwordx4 v{vL0}, {S4(SG)}, s{sG1} offen offset:{p*1024} lds"))
                out.append(o)
        for (s, p), r in self.staged.items():
            out.append([("txt", f"s_add_u32 s{sG1}, s{sb}, {s*16*KB}"),
                        ("vm", ("R", s, p), f"buffer_load_dwordx4 {ar(r,4)}, v{vL0}, {S4(SG)}, s{sG1} offen offset:{p*1024}")])
        return out
    def stage(self, s, bump=True):
        out = []
        slot = s % 10
        firstd = True
        for p in range(4):
            o = []
            if (s, p) in self.staged:
                b, off = divmod(slot * 16 * KB + p * KB, 65536)
                o.append(("txt", f"ds_write_b128 v{self.vw+b}, {ar(self.staged[(s,p)],4)} offset:{off}"))
            else:
                if firstd: o += [("txt", f"s_add_u32 m0, s{sLw}, {slot*16*KB}"), ("txt", "s_nop 0")]
                firstd = False
                o.append(("vm", ("W", s, p), f"buffer_load_dwordx4 v{vL0}, {S4(SG)}, s{sWo} offen offset:{p*1024} lds"))
            if p == 3: o.append(("txt", f"s_add_u32 s{sWo}, s{sWo}, {f's{sJl}' if s == 27 else 4*16*KB if s == 6 else 16*KB}"))
            out.append(o)
        return out
    def act_load(self, lst, t):
        u = t % 14
        if u == 0:
            lst += [("txt", f"s_add_u32 s{sAn}, s{sAn}, 1"), ("txt", f"s_and_b32 s{sAn}, s{sAn}, 7"), ("txt", f"s_mul_i32 s{sAo}, s{sAn}, {14*KB}")]
        lst.append(("vm", ("A", t), f"buffer_load_dwordx4 {ar(self.ARING[u], 4)}, v{vL0}, {S4(SA)}, s{sAo} offen offset:{(u%4)*1024}{LD}"))
        if u % 4 == 3: lst.append(("txt", f"s_add_u32 s{sAo}, s{sAo}, 4096"))
    def main(self, k, cold, own, T1_, T2_, T3_):
        L, RB, NQ, LA = 7, 8, 448, CFG.get("la", 10)
        load = f"buffer_load_dword v240, v{vPollH}, {S4(SR)}, s35 offen sc1"
        def rd(q):
            b, off = lds_base((q % 160) * KB)
            return f"ds_read_b128 {vr(self.wf + 4*(q % RB), 4)}, v{b} offset:{off}"
        def last_dma(s):
            return [("W", s, p) for p in range(4) if (s, p) not in self.staged][-1]
        def mk(nst):
            sched = {}
            for s in range(1, 27):
                if s + 9 >= nst: continue
                for p, o in enumerate(self.stage(s + 9)): sched.setdefault(s * 16 + 9 + 4 * p, []).extend(o)
            body = []
            for q in range(NQ):
                t, nb = q // 4, q % 4
                if q == SPLIT: body.append(("split",))
                if nb == 0 and t >= 14: body.append(("wait", ("A", t)))
                body.append(("txt", f"s_waitcnt lgkmcnt({min(L, NQ - q) - 1})"))
                a = self.acc + 16 * nb
                B = vr(own + 4 * t, 4) if t < 14 else ar(self.ARING[t % 14], 4)
                body.append(("txt", f"v_mfma_f32_32x32x16_bf16 {vr(a,16)}, {vr(self.wf + 4*(q % RB), 4)}, {B}, {'0' if t == 0 else vr(a,16)}"))
                if (q + L) % 16 == 0 and 16 <= q < NQ - 16:
                    s1 = (q + L) // 16
                    if s1 >= 10: body.append(("wait", last_dma(s1)))
                    body.append(("txt", "s_barrier"))
                if q + L < NQ: body.append(("txt", rd(q + L)))
                if nb == 3 and t >= 14 and t + LA < 112: self.act_load(body, t + LA)
                if nb == 0:
                    if t == T1_: body.append(("call", ("S", 13), lambda n: publish(k, cold, n, F_H, sTF, sNF)))
                    if t == T2_:
                        body.append(("txt", f"s_mov_b32 s35, {F_H}")); body.append(("vm", ("S", 14), load))
                    if t == T3_:
                        def chk(n):
                            spin_check(k, load, [240], n, cold)
                            acquire(k, cold)
                            stamp(k)
                        body.append(("call", ("S", 14), chk))
                    if t == 28: body.append(("call", ("S", 14), lambda n: stamp(k)))
                if T3_ <= t < 14:
                    sl = list(range(T3_ * 4, 56))
                    for j in range(LA):
                        if sl[min(len(sl) - 1, j)] == q: self.act_load(body, 14 + j)
                body += sched.get(q, [])
            issued = [("S", i) for i in range(14)]
            out = []
            for x in body:
                if x[0] == "vm": issued.append(x[1]); out.append(x)
                elif x[0] in ("wait", "call"):
                    n = min(63, len(issued) - 1 - issued.index(x[1]))
                    out.append(("txt", f"s_waitcnt vmcnt({n})") if x[0] == "wait" else ("call", n, x[2]))
                else: out.append(x)
            i = out.index(("split",))
            return out[:i], out[i + 1:]
        SPLIT = 312
        h0, t0 = mk(36)
        h1, t1 = mk(28)
        def emit(kk, lst):
            for x in lst:
                if x[0] == "call": x[2](x[1])
                else: kk(x[-1])
        k("s_waitcnt vmcnt(14)")
        k("s_barrier")
        for q in range(L): k(rd(q))
        stamp(k)
        emit(k, h0)
        l1, j = k.label("f2l1"), k.label("f2j")
        k(f"s_cmp_lg_u32 s{sLY}, 0")
        k(f"s_cbranch_scc1 {l1}")
        emit(k, t0)
        k(f"s_branch {j}")
        k(f"{l1}:")
        emit(k, t1)
        k(f"{j}:")
        stamp(k)

def acquire(k, cold):
    acq, back2 = k.label("acq"), k.label("back")
    k(f"s_cmp_lg_u32 s{sMODE}, 0")
    k(f"s_cbranch_scc1 {acq}")
    k(f"{back2}:")
    cold(f"""
    {acq}:
    buffer_inv sc1
    s_waitcnt vmcnt(0)
    s_branch {back2}
    """)

def resident_w_pieces():
    out = []
    for p in range(32):
        o = []
        if p % 4 == 0:
            o.append(("txt", f"s_add_u32 m0, s{sLw}, {1024*p}"))
            o.append(("txt", f"s_add_u32 s{sG1}, s{sWo}, {1024*p}"))
        o.append(("vm", ("W", 0, p), f"buffer_load_dwordx4 v{vL0}, {S4(SG)}, s{sG1} offen offset:{(p%4)*1024} lds"))
        out.append(o)
    return out
def resident_setup(k, w_base, sh):
    k(f"""
    s_lshl_b32 s{sLw}, s{sWV}, 15
    s_lshl_b32 s{sWo}, s{sNT}, {sh}
    s_add_u32 s{sWo}, s{sWo}, s{sLw}
    s_add_u32 s{sWo}, s{sWo}, {w_base}
    """)

def act_ld(k, dst, t):
    k(f"buffer_load_dwordx4 {ar(dst,4)}, v{vL0}, {S4(SR)}, s{sAo} offen offset:{(t%4)*1024}{LD}")
    if t % 4 == 3: k(f"s_add_u32 s{sAo}, s{sAo}, 4096")

def resident_loop(k, acc, wf, act, AB, L=7, hook=None, late=None, rot=0):
    RB = L + 1
    def rd(q):
        base, off = lds_base((q + rot) % 160 * KB)
        k(f"ds_read_b128 {vr(wf + 4*(q % RB), 4)}, v{base} offset:{off}")
    for q in range(L): rd(q)
    stamp(k)
    nx = 0
    for q in range(128):
        t, nb = q // 2, q % 2
        if nb == 0:
            if late and t == 64 - AB: nx = late(k)
            k(f"s_waitcnt vmcnt({min(AB, 64 - t) - 1 + nx})")
            if hook: hook(t)
        k(f"s_waitcnt lgkmcnt({min(L, 128 - q) - 1})")
        a = acc + 16 * nb
        k(f"v_mfma_f32_32x32x16_bf16 {vr(a,16)}, {vr(wf + 4*(q % RB), 4)}, {ar(act + 4*(t % AB), 4)}, {vr(a,16) if t > 0 else '0'}")
        if q + L < 128: rd(q + L)
        if nb == 1 and t + AB < 64: act_ld(k, act + 4 * (t % AB), t + AB)
    stamp(k)

def stats_issue(k, ST, vst, voff, stb=None):
    if stb is None: stb = sTB
    k(f"""
    v_lshrrev_b32 v{voff}, 5, v{vLane}
    v_lshlrev_b32 v{voff}, 17, v{voff}
    v_and_b32 v{vst}, 31, v{vLane}
    v_lshl_add_u32 v{voff}, v{vst}, 3, v{voff}
    s_lshl_b32 s33, s{stb}, 8
    s_add_u32 s33, s33, {ST}
    """)
    for i in range(8):
        k(f"buffer_load_dwordx2 {vr(vst+2*i, 2)}, v{voff}, {S4(SR)}, s33 offen{LD}")
        if i < 7: k("s_add_u32 s33, s33, 16384")

def stats_finish(k, vst, vmean, vrstd):
    for i in range(1, 8):
        k(f"v_add_f32 v{vst}, v{vst}, v{vst+2*i}")
        k(f"v_add_f32 v{vst+1}, v{vst+1}, v{vst+2*i+1}")
    k(f"v_mov_b32 v{vst+2}, v{vst}")
    k(f"v_mov_b32 v{vst+3}, v{vst+1}")
    k.nop(2)
    k(f"v_permlane32_swap_b32 v{vst}, v{vst+2}")
    k(f"v_permlane32_swap_b32 v{vst+1}, v{vst+3}")
    k.nop(1)
    k(f"""
    v_add_f32 v{vst}, v{vst}, v{vst+2}
    v_add_f32 v{vst+1}, v{vst+1}, v{vst+3}
    v_mul_f32 v{vmean}, {f32(-1.0/1024)}, v{vst}
    v_mul_f32 v{vst+1}, {f32(1.0/1024)}, v{vst+1}
    v_fma_f32 v{vst+1}, -v{vmean}, v{vmean}, v{vst+1}
    v_max_f32 v{vst+1}, 0, v{vst+1}
    v_add_f32 v{vst+1}, {f32(1e-5)}, v{vst+1}
    v_rsq_f32 v{vrstd}, v{vst+1}
    """)
    k.nop(1)

def spin_check(k, load, regs, nwait, cold):
    ok, sp = k.label("ok"), k.label("spin")
    def test(kk):
        r = regs[0]
        if len(regs) > 1:
            kk(f"v_min_u32 v{regs[0]}, v{regs[0]}, v{regs[1]}")
            for x in regs[2:]: kk(f"v_min_u32 v{regs[0]}, v{regs[0]}, v{x}")
        kk(f"v_cmp_eq_u32 vcc, 0, v{r}")
        kk("s_cmp_lg_u64 vcc, 0")
    k(f"s_waitcnt vmcnt({nwait})")
    test(k)
    k(f"s_cbranch_scc1 {sp}")
    k(f"{ok}:")
    c = cold
    lp = k.label("sl")
    c(f"{sp}:")
    c(f"s_mov_b32 s32, {SPIN}")
    c(f"{lp}:")
    c(load)
    c("s_waitcnt vmcnt(0)")
    test(c)
    c(f"s_cbranch_scc0 {ok}")
    c("s_sub_u32 s32, s32, 1")
    c("s_cmp_lg_u32 s32, 0")
    c(f"s_cbranch_scc1 {lp}")
    c(f"s_branch {ok}")

def publish(k, cold, nyoung, fpub, srow, scol, cross=False, two=False):
    st = f"buffer_store_dwordx2 v[{vOne}:{vOne+1}]" if two else f"buffer_store_dword v{vOne}"
    k(f"""
    s_lshl_b32 s33, s{srow}, 7
    s_lshl_b32 s32, s{scol}, {3 if two else 2}
    s_add_u32 s33, s33, s32
    s_add_u32 s33, s33, {fpub}
    """)
    if cross:
        k(f"""
        s_waitcnt vmcnt({nyoung})
        s_mov_b64 exec, 1
        {st}, off, {S4(SR)}, s33 sc1
        s_mov_b64 exec, -1
        """)
    else:
        safe, back = k.label("safe"), k.label("back")
        k(f"""
        s_cmp_lg_u32 s{sMODE}, 0
        s_cbranch_scc1 {safe}
        s_waitcnt vmcnt({nyoung})
        s_mov_b64 exec, 1
        {st}, off, {S4(SR)}, s33
        s_mov_b64 exec, -1
        {back}:
        """)
        cold(f"""
        {safe}:
        s_waitcnt vmcnt(0)
        buffer_wbl2 sc1
        s_waitcnt vmcnt(0)
        s_mov_b64 exec, 1
        {st}, off, {S4(SR)}, s33 sc1
        s_mov_b64 exec, -1
        s_branch {back}
        """)

def await_flags(k, cold, pre, post, fwait, vpoll, vtmp, cross=False):
    for p in pre: emit_items(k, p)
    k(f"s_mov_b32 s35, {fwait}")
    load = f"buffer_load_dword v{vtmp}, v{vpoll}, {S4(SR)}, s35 offen sc1"
    k(load)
    for p in post: emit_items(k, p)
    spin_check(k, load, [vtmp], sum(nvm(p) for p in post), cold)
    if not cross:
        acq, back2 = k.label("acq"), k.label("back")
        k(f"s_cmp_lg_u32 s{sMODE}, 0")
        k(f"s_cbranch_scc1 {acq}")
        k(f"{back2}:")
        cold(f"""
        {acq}:
        buffer_inv sc1
        s_waitcnt vmcnt(0)
        s_branch {back2}
        """)

def handoff(k, cold, pieces, n1, n2, flag, srow, scol, vpoll, vtmp, cross=False):
    for p in pieces[:n1]: emit_items(k, p)
    publish(k, cold, sum(nvm(p) for p in pieces[:n1]), flag, srow, scol, cross)
    stamp(k)
    await_flags(k, cold, pieces[n1:n2], pieces[n2:], flag, vpoll, vtmp, cross)
    stamp(k)

def x_epilogue(k, acc, pk, nt64, srow, scol, XO, STO, sc=""):
    n = 16 * nt64
    t = pk + n
    lg = {1: 0, 2: 1}[nt64]
    for i in range(2 * nt64): k(f"v_mov_b32 v{t+i}, 0")
    k(f"""
    v_mov_b32 v{t+4}, 0x3f803f80
    v_and_b32 v5, 31, v{vLane}
    v_lshlrev_b32 v5, 3, v5
    s_lshl_b32 s35, s{srow}, 16
    s_lshl_b32 s33, s{scol}, {12+lg}
    s_add_u32 s35, s35, s33
    s_add_u32 s35, s35, {XO}
    s_lshl_b32 s34, s{scol}, {14+lg}
    s_lshl_b32 s33, s{srow}, 8
    s_add_u32 s34, s34, s33
    s_add_u32 s34, s34, {STO}
    """)
    for h in range(nt64):
        for i in range(16 * h, 16 * h + 16): k(f"v_cvt_pk_bf16_f32 v{pk+i}, v{acc+2*i}, v{acc+2*i+1}")
        if h: k("s_add_u32 s35, s35, 4096")
        for q in range(4):
            k(f"buffer_store_dwordx4 {vr(pk+16*h+4*q,4)}, v{vL0}, {S4(SR)}, s35 offen offset:{1024*q}{sc}")
    for i in range(16):
        for h in range(nt64):
            k(f"v_dot2_f32_bf16 v{t+2*h}, v{pk+16*h+i}, v{t+4}, v{t+2*h}")
            k(f"v_dot2_f32_bf16 v{t+2*h+1}, v{pk+16*h+i}, v{pk+16*h+i}, v{t+2*h+1}")
    k.nop(3)
    for i in range(2 * nt64): k(f"v_mov_b32 v{t+6+i}, v{t+i}")
    k.nop(2)
    for i in range(2 * nt64): k(f"v_permlane32_swap_b32 v{t+i}, v{t+6+i}")
    k.nop(1)
    for i in range(2 * nt64): k(f"v_add_f32 v{t+i}, v{t+i}, v{t+6+i}")
    for h in range(nt64):
        if h: k("s_add_u32 s34, s34, 16384")
        k(f"buffer_store_dwordx2 {vr(t+2*h,2)}, v5, {S4(SR)}, s34 offen{sc}")

def residual(k, acc, nblk=2, src=None):
    if src is None: src = lambda i: ar(aX + 4 * i, 4)
    for half in range(2):
        for nb in range(nblk):
            a = acc + 16 * nb
            k(f"v_mfma_f32_32x32x16_bf16 {vr(a,16)}, {ar(aID+4*half,4)}, {src(2*nb+half)}, {vr(a,16)}")

aWKV, aCQ = 128, 192
def kvw_pieces():
    ex = []
    for i in range(16):
        o = []
        if i % 4 == 0: o.append(("txt", f"s_add_u32 s34, s83, {1024*i}"))
        o.append(("vm", ("X", i), f"buffer_load_dwordx4 {ar(aWKV+4*i,4)}, v{vL0}, {S4(SG)}, s34 offen offset:{(i%4)*1024}"))
        ex.append(o)
    ex.append([("txt", f"s_lshl_b32 s34, s{sNT}, 11"),
               ("vm", ("X", 16), f"buffer_load_dwordx4 {ar(aCQ,4)}, v{vL0}, {S4(SG)}, s34 offen")])
    ex.append([("vm", ("X", 17), f"buffer_load_dwordx4 {ar(aCQ+4,4)}, v{vL0}, {S4(SG)}, s34 offen offset:1024")])
    ex.append([("vm", ("X", 18), f"buffer_load_dwordx4 {ar(aCQ+8,4)}, v{vL0}, {S4(SG)}, s84 offen")])
    return ex

def gen_main():
    k = K("main_kernel")
    cold = K("main_cold")
    k.uid = 1000
    end = k.label("end")
    QS = (32 ** -0.5) * LOG2E
    k(f"""
    s_cmp_ge_u32 s2, 256
    s_cbranch_scc1 {end}
    s_load_dwordx2 s[4:5], s[0:1], {A_WS}
    s_load_dwordx2 s[6:7], s[0:1], {A_OUT}
    s_load_dwordx4 s[48:51], s[0:1], {A_W1}
    v_lshrrev_b32 v1, 6, v0
    v_and_b32 v{vLane}, 63, v0
    v_readfirstlane_b32 s{sWV}, v1
    v_lshlrev_b32 v{vL0}, 4, v{vLane}
    v_add_u32 v{vL1}, 0x10000, v{vL0}
    v_add_u32 v{vL2}, 0x20000, v{vL0}
    s_and_b32 s{sMT}, s2, 7
    s_lshl_b32 s{sMT}, s{sMT}, 1
    s_lshr_b32 s32, s2, 7
    s_add_u32 s{sMT}, s{sMT}, s32
    s_lshr_b32 s{sNT}, s2, 3
    s_and_b32 s{sNT}, s{sNT}, 15
    s_lshl_b32 s{sTB}, s{sMT}, 2
    s_lshr_b32 s32, s{sNT}, 2
    s_add_u32 s{sTBs}, s{sTB}, s32
    s_add_u32 s{sTB}, s{sTB}, s{sWV}
    s_lshr_b32 s32, s2, 1
    s_and_b32 s32, s32, 3
    s_lshl_b32 s32, s32, 2
    s_lshr_b32 s33, s2, 6
    s_add_u32 s32, s32, s33
    s_lshl_b32 s{sTF}, s32, 2
    s_add_u32 s{sTF}, s{sTF}, s{sWV}
    s_lshl_b32 s{sFX}, s33, 2
    s_add_u32 s{sFX}, s{sFX}, s{sWV}
    s_and_b32 s{sJ}, s{sNT}, 7
    s_and_b32 s32, s2, 1
    s_lshl_b32 s{sNF}, s32, 3
    s_add_u32 s{sNF}, s{sNF}, s{sJ}
    s_lshr_b32 s33, s2, 7
    s_cmp_eq_u32 s32, s33
    s_cselect_b32 s{sOWN}, 1, 0
    s_mov_b32 s{sLY}, 0
    s_mov_b32 s{sMODE}, 1
    s_mov_b32 s{sSEL}, 0x07060302
    s_mov_b32 s{sL2E}, {f32(-LOG2E)}
    s_mov_b32 s{sL2E+1}, {f32(-LOG2E)}
    s_getreg_b32 s{sXCC}, hwreg(HW_REG_XCC_ID)
    s_and_b32 s{sXCC}, s{sXCC}, 15
    s_add_u32 s{sXCC}, s{sXCC}, 1
    """)
    if PROF:
        k("s_mov_b32 s72, 0"); k("v_mov_b32 v255, 0")
        k("s_memrealtime s[70:71]"); k("s_waitcnt lgkmcnt(0)"); k("v_writelane_b32 v255, s70, 61")
    k(f"""
    s_lshr_b32 s32, s{sNT}, 1
    s_and_b32 s32, s32, 1
    s_add_u32 s{sKVr}, s32, 1
    s_lshl_b32 s83, s32, 16
    s_lshl_b32 s33, s{sWV}, 14
    s_add_u32 s83, s83, s33
    s_add_u32 s83, s83, {WKV}
    s_lshl_b32 s84, s32, 10
    s_add_u32 s84, s84, {CQ + 32*KB}
    s_lshl_b32 s{sKVf}, s{sTBs}, 1
    s_add_u32 s{sKVf}, s{sKVf}, s32
    s_lshl_b32 s{sKVf}, s{sKVf}, 2
    s_add_u32 s{sKVf}, s{sKVf}, {KVF}
    s_cmp_eq_u32 s{sTBs}, s{sTB}
    s_cselect_b32 s{sKVf}, s{sKVf}, {OOB}
    s_bitcmp1_b32 s{sNT}, 0
    s_cselect_b32 s{sKVr}, 0, s{sKVr}
    s_cselect_b32 s{sKVf}, {OOB}, s{sKVf}
    s_cselect_b32 s83, {OOB}, s83
    s_cselect_b32 s{sTBs}, s{sTB}, s{sTBs}
    s_waitcnt lgkmcnt(0)
    """)
    srd(k, SG, "s4", "s5", GS)
    srd_off(k, SR, sWS, GS, 2 * RS)
    stamp(k)
    acc, kva, wf, vst, bc = 8, 40, 56, 88, 104
    vmean, vrs = 5, 6
    AB = 16
    aKA = 64
    def kv_act():
        k(f"""
        s_lshl_b32 s{sAo}, s{sTBs}, 16
        s_lshl_b32 s33, s{sWV}, 14
        s_add_u32 s{sAo}, s{sAo}, s33
        s_cmp_eq_u32 s{sKVr}, 0
        s_cselect_b32 s{sAo}, {OOB}, s{sAo}
        """)
        for t in range(16): act_ld(k, aKA + 4 * t, t)
    def own_act():
        k(f"s_lshl_b32 s{sAo}, s{sTB}, 16")
        for t in range(AB): act_ld(k, 4 * t, t)
    assert XIN == 0
    stats_issue(k, STIN, vst, 7)
    for p in kvw_pieces(): emit_items(k, p)
    kv_act()
    resident_setup(k, WT + TQ, 20)
    k(f"s_sub_u32 s{sLw}, s{sLw}, 0x8000")
    k(f"s_cmp_eq_u32 s{sWV}, 0")
    k(f"s_cselect_b32 s{sLw}, 0x20000, s{sLw}")
    wq = resident_w_pieces()
    for p in wq[:16]: emit_items(k, p)
    k(f"""
    v_mov_b32 v{vOne}, s{sXCC}
    s_lshl_b32 s33, s{sMT}, 6
    s_lshl_b32 s32, s{sNT}, 2
    s_add_u32 s33, s33, s32
    s_add_u32 s33, s33, {XCC}
    s_cmp_eq_u32 s{sWV}, 0
    s_cselect_b32 s33, s33, {OOB}
    s_mov_b64 exec, 1
    buffer_store_dword v{vOne}, off, {S4(SG)}, s33 sc1
    s_mov_b64 exec, -1
    """)
    k(f"""
    v_and_b32 v5, 15, v{vLane}
    v_lshlrev_b32 v5, 2, v5
    s_lshl_b32 s32, s{sTB}, 7
    v_add_u32 v{vPoll}, s32, v5
    s_lshl_b32 s32, s{sTBs}, 7
    v_add_u32 v{vPollA}, s32, v5
    v_cmp_gt_u32 vcc, 16, v{vLane}
    v_mov_b32 v{vOne}, 1
    v_mov_b32 v{vOne+1}, 1
    v_cndmask_b32 v{vPollA}, v{vPollA}, v{vPoll}, vcc
    s_lshl_b32 s32, s{sTF}, 7
    v_add_u32 v{vPollX}, s32, v5
    s_and_b32 s33, s2, 1
    s_lshl_b32 s33, s33, 5
    s_add_u32 s33, s33, s32
    v_and_b32 v5, 28, v5
    v_add_u32 v{vPollH}, s33, v5
    """)
    k(f"""
    v_and_b32 v5, 31, v{vLane}
    v_lshrrev_b32 v6, 5, v{vLane}
    v_lshlrev_b32 v6, 2, v6
    v_sub_u32 v5, v5, v6
    v_mov_b32 v6, 0x3f80
    """)
    for half in range(2):
        for i, zb in enumerate((0, 2, 8, 10)):
            d = 8 + 4 * half + i
            k(f"v_subrev_u32 v{d}, {zb + 16*half}, v5")
            k(f"v_cmp_gt_u32 vcc, 2, v{d}")
            k(f"v_lshlrev_b32 v{d}, 4, v{d}")
            k(f"v_lshlrev_b32 v{d}, v{d}, v6")
            k(f"v_cndmask_b32 v{d}, 0, v{d}, vcc")
    for i in range(8): k(f"v_accvgpr_write_b32 a{aID+i}, v{8+i}")
    k(f"""
    v_lshrrev_b32 v6, 4, v{vLane}
    v_lshrrev_b32 v7, 2, v{vLane}
    v_xor_b32 v6, v6, v7
    v_and_b32 v6, 1, v6
    v_cmp_eq_u32 vcc, 0, v6
    v_mov_b32 v7, 0x3f803f80
    s_nop 0
    v_cndmask_b32 v6, 0, v7, vcc
    """)
    k.nop(1)
    for i in range(4): k(f"v_accvgpr_write_b32 a{aON+i}, v6")
    l1, lo_, l2, join = k.label("p1"), k.label("po"), k.label("p2"), k.label("pj")
    k(f"""
    s_and_b32 s32, s2, 7
    s_lshl_b32 s32, s32, 5
    s_lshr_b32 s33, s2, 3
    s_add_u32 s32, s32, s33
    s_lshl_b32 s34, s{sWV}, 4
    s_mov_b32 s{sCorr}, {OOB}
    s_mov_b32 s{sDsz}, {GS}
    s_mov_b32 s45, s34
    s_mov_b32 s{sPlim}, -1
    s_cmp_ge_u32 s32, 112
    s_cbranch_scc1 {l2}
    s_mov_b32 s{SP}, s48
    s_mov_b32 s{SP+1}, s49
    s_mov_b32 s{sPsz}, {1024*7168}
    s_mov_b32 s{sPss}, 7168
    s_mul_i32 s{sPd}, s32, 9363
    s_lshr_b32 s{sPd}, s{sPd}, 16
    s_mul_i32 s35, s{sPd}, 7
    s_sub_u32 s35, s32, s35
    s_lshl_b32 s{sPd}, s{sPd}, 10
    s_add_u32 s{sPd}, s{sPd}, s35
    s_lshl_b32 s{sPd}, s{sPd}, 10
    s_add_u32 s{sPd}, s{sPd}, {WT + T1}
    s_mov_b32 s{sPds}, 7168
    s_lshl_b32 s{sCorr}, s32, 10
    s_add_u32 s{sCorr}, s{sCorr}, {C1}
    s_branch {join}
    {l2}:
    s_mov_b32 s{SP}, s50
    s_mov_b32 s{SP+1}, s51
    s_cmp_ge_u32 s32, 224
    s_cselect_b32 s{sPsz}, 0, {3584*2048}
    s_cselect_b32 s{sDsz}, 0, s{sDsz}
    s_mov_b32 s{sPss}, 2048
    s_sub_u32 s35, s32, 112
    s_lshl_b32 s35, s35, 2
    s_add_u32 s35, s35, s{sWV}
    s_mul_i32 s32, s35, 4682
    s_lshr_b32 s32, s32, 16
    s_mul_i32 s34, s32, 14
    s_sub_u32 s34, s35, s34
    s_lshl_b32 s34, s34, 4
    s_lshr_b32 s{sPd}, s32, 2
    s_mul_i32 s35, s{sPd}, 14
    s_cmp_ge_u32 s34, 112
    s_cselect_b32 s33, 8, 0
    s_cselect_b32 s45, 0, 112
    s_add_u32 s45, s45, s34
    s_sub_u32 s45, s45, s35
    s_sub_u32 s35, s45, 112
    s_cmp_ge_u32 s45, 112
    s_cselect_b32 s45, s35, s45
    s_add_u32 s{sPd}, s{sPd}, s33
    s_lshl_b32 s{sPd}, s{sPd}, 20
    s_add_u32 s{sPd}, s{sPd}, {WT + T2}
    s_add_u32 s{sPlim}, s{sPd}, {448*KB}
    s_and_b32 s35, s32, 3
    s_lshl_b32 s35, s35, 10
    s_add_u32 s{sPd}, s{sPd}, s35
    s_mov_b32 s{sPds}, 4096
    {join}:
    s_mov_b32 s{SP+2}, 0
    s_mov_b32 s{SP+3}, 0x20000
    v_lshrrev_b32 v{vPk}, 2, v{vLane}
    v_mul_lo_u32 v{vPk}, v{vPk}, s{sPss}
    v_and_b32 v5, 3, v{vLane}
    v_lshl_add_u32 v{vPk}, v5, 4, v{vPk}
    s_lshl_b32 s{sPss}, s{sPss}, 4
    s_mul_i32 s{sPs}, s34, s{sPss}
    s_lshl_b32 s32, s32, 6
    s_add_u32 s{sPs}, s{sPs}, s32
    s_mul_i32 s34, s45, s{sPds}
    s_add_u32 s{sPd}, s{sPd}, s34
    s_lshl_b32 s{sSp2}, s2, 2
    s_add_u32 s{sSp2}, s{sSp2}, {WPF}
    s_cmp_eq_u32 s{sWV}, 0
    s_cselect_b32 s{sSp2}, s{sSp2}, {OOB}
    """)
    srd(k, SD, "s4", "s5", f"s{sDsz}")
    k(f"v_lshlrev_b32 v{vTch}, 7, v{vLane}")
    k(f"s_mov_b32 s{sTch}, {OOB}")
    k(f"s_mov_b32 s{sT2}, {OOB}")
    k(f"s_and_b32 s{sXS}, s{sMT}, 1")
    k(f"s_lshl_b32 s{sXS}, s{sXS}, 2")
    k(f"s_add_u32 s{sXS}, s{sXS}, s{sWV}")
    tr_addr(k, vTr, 5)
    k(f"s_lshl_b32 s32, s{sWV}, 12")
    k(f"v_add_u32 v{vTr}, s32, v{vTr}")

    qgo = k.label("qgo")
    def kv_math(ny, after, bar=False):
        nokv, kvV, kvj = k.label("nokv"), k.label("kvV"), k.label("kvj")
        k(f"s_waitcnt vmcnt({min(63, 16+ny)})")
        if bar: k("s_barrier")
        stats_finish(k, vst, vmean, vrs)
        split3_pack(k, vmean, vst, vst + 1, bc, "B")
        k(f"s_cmp_eq_u32 s{sKVr}, 0")
        k(f"s_cbranch_scc1 {kvj}")
        k(f"s_lshl_b32 s33, s{sWV}, 12")
        k(f"s_add_u32 s33, s33, 0x18000")
        k(f"v_add_u32 v7, s33, v{vL0}")
        k(f"s_cmp_eq_u32 s{sKVr}, 2")
        k(f"s_cbranch_scc1 {kvV}")
        for role in "KV":
            if role == "V": k(f"{kvV}:")
            for i in range(16):
                if i % 4 == 0: k(f"s_waitcnt vmcnt({ny + 12 - i})")
                w_, a_ = ar(aWKV + 4 * i, 4), ar(aKA + 4 * i, 4)
                A_, B_ = (w_, a_) if role == "K" else (a_, w_)
                k(f"v_mfma_f32_32x32x16_bf16 {vr(kva,16)}, {A_}, {B_}, {vr(kva,16) if i else '0'}")
            k.nop(12)
            for q in range(4): k(f"ds_write_b128 v7, {vr(kva+4*q,4)} offset:{1024*q}")
            k("s_waitcnt lgkmcnt(0)")
            k("s_barrier")
            k(f"s_cmp_lg_u32 s{sTBs}, s{sTB}")
            k(f"s_cbranch_scc1 {kvj}")
            k(f"v_add_u32 v7, 0x18000, v{vL0}")
            A_, B_ = (ar(aCQ + 8, 4), vr(bc, 4)) if role == "K" else (vr(bc, 4), ar(aCQ + 8, 4))
            k(f"v_mfma_f32_32x32x16_bf16 {vr(kva,16)}, {A_}, {B_}, 0")
            T = 108
            for w in range(4):
                for q in range(4): k(f"ds_read_b128 {vr(T+16*w+4*q,4)}, v7 offset:{4096*w+1024*q}")
                if w == 1: k("s_waitcnt lgkmcnt(4)")
            if role == "V":
                k(f"""
                v_and_b32 v{vst}, 31, v{vLane}
                v_lshlrev_b32 v{vst}, 2, v{vst}
                v_add_u32 v{vst}, 0x1c000, v{vst}
                ds_write_b32 v{vst}, v{vrs}
                v_lshrrev_b32 v{vst+1}, 5, v{vLane}
                v_lshlrev_b32 v{vst+1}, 4, v{vst+1}
                v_add_u32 v{vst+1}, 0x1c000, v{vst+1}
                s_waitcnt lgkmcnt(0)
                """)
                for g in range(4): k(f"ds_read_b128 {vr(wf+4*g,4)}, v{vst+1} offset:{32*g}")
            k(f"s_lshl_b32 s35, s{sTB}, 12")
            k(f"s_add_u32 s35, s35, {KV + (0 if role == 'K' else 2048)}")
            k("s_waitcnt lgkmcnt(0)")
            for w in range(4):
                for i in range(8): k(f"v_pk_add_f32 {vr(kva+2*i,2)}, {vr(kva+2*i,2)}, {vr(T+16*w+2*i,2)}")
            for i in range(16): k(f"v_mul_f32 v{kva+i}, v{kva+i}, v{vrs if role == 'K' else wf+i}")
            for i in range(8): k(f"v_cvt_pk_bf16_f32 v{T+i}, v{kva+2*i}, v{kva+2*i+1}")
            for half in range(2):
                k(f"buffer_store_dwordx4 {vr(T+4*half,4)}, v{vL0}, {S4(SR)}, s35 offen offset:{1024*half} sc1")
            if role == "K": k(f"s_branch {kvj}")
        k(f"{kvj}:")
        after()
    stamp(k)
    def after0():
        for p in wq[16:]: emit_items(k, p)
        own_act()
        k(f"s_waitcnt vmcnt({AB})")
        k("s_barrier")
        k(f"s_branch {qgo}")
    kv_math(16, after0)
    layer = k.label("layer")
    k(f"{layer}:")
    if PROF:
        k("s_memrealtime s[70:71]"); k("s_waitcnt lgkmcnt(0)"); k("v_writelane_b32 v255, s70, 60")
    stamp(k)
    stats_issue(k, STIN, vst, 7)
    kv_act()
    own_act()
    kv_math(AB, lambda: None, bar=True)
    k(f"{qgo}:")
    HT = CFG.get("ht", 10)
    def hook(t):
        if t == HT:
            k(f"s_waitcnt vmcnt({HT})")
            k("s_mov_b64 exec, 1")
            k(f"buffer_store_dword v{vOne}, off, {S4(SR)}, s{sKVf} sc1")
            k("s_mov_b64 exec, -1")
    def lateA(k):
        tile_off(k, 35, 0)
        for q in range(4): k(f"buffer_load_dwordx4 {ar(aX+4*q,4)}, v{vL0}, {S4(SR)}, s35 offen offset:{1024*q}{LD}")
        for i in range(4): k(f"v_mov_b32 v{244+i}, -1")
        k(f"s_add_u32 s35, s35, {EX}")
        for q in range(4): k(f"buffer_store_dwordx4 v[244:247], v{vL0}, {S4(SR)}, s35 offen offset:{1024*q} sc1")
        return 8
    resident_loop(k, acc, wf, 0, AB, hook=hook, late=lateA, rot=128)
    Qr, CI, S0, Pr, Or, Lr = 112, 128, 160, 192, 200, 232
    KBUF, VBUF, PKT = 56, 72, 88
    vcur, vnxt, vcs = 104, 105, 106
    aCS, aALL = 0, 16
    kvload = f"buffer_load_dwordx2 v[240:241], v7, {S4(SR)}, s35 offen sc1"
    k(f"v_lshlrev_b32 v7, 3, v{vLane}")
    k(f"s_mov_b32 s35, {KVF}")
    k(kvload)
    for nb in range(2):
        a = acc + 16 * nb
        k(f"v_mfma_f32_32x32x16_bf16 {vr(a,16)}, {ar(aCQ+4*nb,4)}, {vr(bc,4)}, {vr(a,16)}")
    k(f"v_mul_f32 v{vrs}, {f32(QS)}, v{vrs}")
    for i in range(32): k(f"v_mov_b32 v{Or+i}, 0")
    for i in range(8): k(f"v_mov_b32 v{Lr+i}, 0")
    for i in range(8): k(f"v_mov_b32 v{Pr+i}, 0")
    for i in range(32): k(f"v_mul_f32 v{acc+i}, v{acc+i}, v{vrs}")
    for i in range(16): k(f"v_cvt_pk_bf16_f32 v{Qr+i}, v{acc+2*i}, v{acc+2*i+1}")
    k("s_barrier")
    stamp(k)
    k(f"s_add_u32 s{SW}, s{SR}, {KV}")
    k(f"s_addc_u32 s{SW+1}, s{SR+1}, 0")
    k(f"s_mov_b32 s{SW+2}, {256*KB}")
    k(f"s_mov_b32 s{SW+3}, 0x20000")
    k(f"""
    s_lshl_b32 s{sWo}, s{sWV}, 13
    s_add_u32 s{sDst}, s{sWo}, 0x10000
    s_add_u32 s{sLw}, s{sWo}, 0x28000
    s_mov_b32 s{sCur}, 0x10000
    s_mov_b32 s{sNxt}, 0x18000
    s_mov_b32 s{SP+2}, s{sPsz}
    """)
    spin_check(k, kvload, [240, 241], 0, cold)
    stamp(k)
    def kv_piece(p):
        pre, post = [], []
        if p % 4 == 0:
            pre = [f"s_add_u32 m0, s{sDst}, {1024*p}"]
        if p == 3: post = [f"s_add_u32 s{sWo}, s{sWo}, 4096"]
        if p == 4: post = [f"s_add_u32 s{sDst}, s{sDst}, 0x8000"]
        if p == 5: post = [f"s_sub_u32 s{sG1}, s{sDst}, 0x18000"]
        if p == 6: pre = [f"s_cmp_ge_u32 s{sDst}, s{sLw}"]; post = [f"s_cselect_b32 s{sDst}, s{sG1}, s{sDst}"]
        if p == 7: post = [f"s_add_u32 s{sWo}, s{sWo}, {0x8000-4096}"]
        return pre, f"buffer_load_dwordx4 v{vL0}, {S4(SW)}, s{sWo} offen offset:{1024*(p%4)} sc1 lds", post
    def kv_emit(p):
        pre, d, post = kv_piece(p)
        for x in pre: k(x)
        if pre: k("s_nop 0")
        k(d)
        for x in post: k(x)
    def pack_piece(i):
        return [f"s_add_u32 m0, s87, {1024*i}"], f"buffer_load_dwordx4 v{vPk}, {S4(SP)}, s{sPs} offen nt lds", [f"s_add_u32 s{sPs}, s{sPs}, s{sPss}"]
    k(f"s_lshl_b32 s87, s{sWV}, 12")
    for p in range(8): kv_emit(p)
    for i in range(4):
        pre, d, post = pack_piece(i)
        k(pre[0]); k("s_nop 0"); k(d); k(post[0])
    kv_emit(0); kv_emit(1)
    k(f"v_mov_b32 v7, 0x3f803f80")
    for i in range(16): k(f"v_accvgpr_write_b32 a{aCS+i}, 0")
    for i in range(4): k(f"v_accvgpr_write_b32 a{aALL+i}, v7")
    for i in range(8): k(f"v_mov_b32 v{VBUF+8+i}, 0")
    k(f"""
    v_add_u32 v{vcur}, s{sCur}, v{vL0}
    v_add_u32 v{vnxt}, s{sNxt}, v{vL0}
    v_and_b32 v{vcs}, 31, v{vLane}
    v_lshlrev_b32 v{vcs}, 2, v{vcs}
    s_lshl_b32 s33, s{sWV}, 7
    s_add_u32 s33, s33, 0x4000
    v_add_u32 v{vcs}, s33, v{vcs}
    v_mov_b32 v{vT2}, 0
    s_waitcnt vmcnt(6)
    s_barrier
    """)
    for f in range(2): k(f"ds_read_b128 {vr(KBUF+4*f,4)}, v{vcur} offset:{1024*f}")
    for f in range(2): k(f"ds_read_b128 {vr(VBUF+4*f,4)}, v{vcur} offset:{2048+1024*f}")
    k("s_waitcnt lgkmcnt(2)")
    for qt in range(2):
        sx = S0 + 16 * qt
        k(f"v_mfma_f32_32x32x16_bf16 {vr(sx,16)}, {vr(KBUF,4)}, {vr(Qr+8*qt,4)}, 0")
        k(f"v_mfma_f32_32x32x16_bf16 {vr(sx,16)}, {vr(KBUF+4,4)}, {vr(Qr+8*qt+4,4)}, {vr(sx,16)}")
    k.nop(10)
    def tile_max(kk, dst, src, tmp):
        kk(f"v_max3_f32 v{dst}, v{src}, v{src+1}, v{src+2}")
        for i in range(3, 15, 2): kk(f"v_max3_f32 v{dst}, v{dst}, v{src+i}, v{src+i+1}")
        kk(f"v_max_f32 v{dst}, v{dst}, v{src+15}")
        kk(f"v_mov_b32 v{tmp}, v{dst}")
        kk.nop(2)
        kk(f"v_permlane32_swap_b32 v{dst}, v{tmp}")
        kk.nop(1)
        kk(f"v_max_f32 v{dst}, v{dst}, v{tmp}")
    for qt in range(2):
        tile_max(k, 6, S0 + 16 * qt, 7)
        for i in range(16): k(f"v_sub_f32 v{CI+16*qt+i}, 0, v6")
        if qt == 0:
            for i in range(16): k(f"v_sub_f32 v{S0+i}, v{S0+i}, v6")
    k("s_waitcnt lgkmcnt(0)")
    def body(pack):
        for v in range(16):
            t, qt = v // 2, v % 2
            c, n = S0 + 16 * qt, S0 + 16 * (1 - qt)
            e = lambda i: k(f"v_exp_f32 v{c+i}, v{c+i}")
            cv = lambda i: k(f"v_cvt_pk_bf16_f32 v{Pr+i}, v{c+2*i}, v{c+2*i+1}")
            oq, tn, tp = 1 - qt, t + qt, t - 1 + qt
            Kn, Vc, Vp = KBUF + 8 * (tn % 2), VBUF + 8 * (t % 2), VBUF + 8 * (tp % 2)
            base = vcur if t + 1 < 8 else vnxt
            dst = (KBUF if qt == 0 else VBUF) + 8 * ((t + 1) % 2)
            rd = [f"ds_read_b128 {vr(dst+4*j,4)}, v{base} offset:{((t+1) % 8)*4096 + 2048*qt + 1024*j}" for j in range(2)]
            sl = [[] for _ in range(6)]
            tail = []
            if v == 14:
                sl[0].append("s_barrier"); sl[1].append(rd[0]); sl[2].append(rd[1])
            else:
                sl[0].append(rd[0]); sl[1].append(rd[1])
            vm = None
            if v >= 14 or v < 6: vm = kv_piece((v + 2) % 16)
            if pack and 10 <= v < 14: vm = pack_piece(v - 10)
            if vm:
                sl[2] += vm[0]; sl[3].append(vm[1]); sl[4] += vm[2]
            if v == 13: sl[4].append(f"s_waitcnt vmcnt({8 if pack else 2})")
            if v == 7 and not pack:
                sl[3].append(f"buffer_load_dword v{vDum}, v{vT2}, {S4(SR)}, s{sT2} offen sc1"); sl[4].append(f"s_mov_b32 s{sT2}, {OOB}")
            if v == 6 and not pack:
                sl[3].append(f"buffer_load_dword v{vDum}, v{vTch}, {S4(SG)}, s{sTch} offen"); sl[4].append(f"s_mov_b32 s{sTch}, {OOB}")
            if v == 8: sl[2] += [f"s_mov_b32 s{sCur}, s{sNxt}"] if False else []
            if pack:
                tr = lambda i: [f"ds_read_b64_tr_b16 {vr(PKT+4*i,2)}, v{vTr} offset:{1024*i}", f"ds_read_b64_tr_b16 {vr(PKT+4*i+2,2)}, v{vTr} offset:{1024*i+512}"]
                st = lambda i: [f"buffer_store_dwordx4 {vr(PKT+4*i,4)}, v{vL0}, {S4(SD)}, s{sPd} offen sc1", f"s_add_u32 s{sPd}, s{sPd}, s{sPds}",
                                f"s_sub_u32 s33, s{sPd}, {448*KB}", f"s_cmp_ge_u32 s{sPd}, s{sPlim}", f"s_cselect_b32 s{sPd}, s33, s{sPd}"]
                cs = lambda i: f"v_mfma_f32_32x32x16_bf16 {ar(aCS,16)}, {ar(aALL,4)}, {vr(PKT+4*i,4)}, {ar(aCS,16)}"
                if v == 6:
                    sl[1].append("s_waitcnt vmcnt(8)"); sl[2] += tr(0); sl[3] += tr(1)
                if v == 7:
                    sl[2] += tr(2); sl[3] += tr(3); sl[4] += st(0); tail.append(cs(0))
                if v == 8:
                    sl[3] += st(1); tail.append(cs(1)); sl[2].append(f"s_cmp_gt_u32 s{sCt}, 5"); sl[4].append(f"s_cselect_b32 s{SP+2}, s{sPsz}, 0")
                    sl[3] = [st(1)[0]]; sl[5] += st(1)[1:]
                if v == 9:
                    sl[2] += st(2); sl[4] += st(3); tail.append(cs(2))
                if v == 10: tail.append(cs(3))
                if v == 12: sl[1].append(f"ds_write_b32 v{vcs}, a{aCS}")
            sl[5].insert(0, "s_waitcnt lgkmcnt(0)")
            def M(txt, i):
                k(txt)
                for x in sl[i]: k(x)
            e(0); e(1); e(2)
            M(f"v_mfma_f32_32x32x16_bf16 {vr(Or+16*oq,16)}, {vr(Vp+4,4)}, {vr(Pr+4,4)}, {vr(Or+16*oq,16)}", 0)
            e(3); e(4); e(5)
            M(f"v_mfma_f32_16x16x32_bf16 {vr(Lr+4*oq,4)}, {ar(aON,4)}, {vr(Pr+4,4)}, {vr(Lr+4*oq,4)}", 1)
            e(6); e(7); cv(0); cv(1)
            M(f"v_mfma_f32_32x32x16_bf16 {vr(n,16)}, {vr(Kn,4)}, {vr(Qr+8*oq,4)}, {vr(CI+16*oq,16)}", 2)
            cv(2); cv(3); e(8); e(9); e(10)
            M(f"v_mfma_f32_32x32x16_bf16 {vr(n,16)}, {vr(Kn+4,4)}, {vr(Qr+8*oq+4,4)}, {vr(n,16)}", 3)
            e(11); e(12); e(13)
            M(f"v_mfma_f32_32x32x16_bf16 {vr(Or+16*qt,16)}, {vr(Vc,4)}, {vr(Pr,4)}, {vr(Or+16*qt,16)}", 4)
            e(14); e(15); cv(4); cv(5)
            M(f"v_mfma_f32_16x16x32_bf16 {vr(Lr+4*qt,4)}, {ar(aON,4)}, {vr(Pr,4)}, {vr(Lr+4*qt,4)}", 5)
            cv(6); cv(7)
            for x in tail: k(x)
        k(f"""
        s_add_u32 s{sNxt}, s{sNxt}, 0x8000
        s_cmp_ge_u32 s{sNxt}, 0x28000
        s_cselect_b32 s{sNxt}, 0x10000, s{sNxt}
        v_mov_b32 v{vcur}, v{vnxt}
        v_add_u32 v{vnxt}, s{sNxt}, v{vL0}
        s_sub_u32 s{sCt}, s{sCt}, 1
        """)
    lpP, lpN, spec, bk, nsp1 = k.label("aP"), k.label("aN"), k.label("spec"), k.label("bk"), k.label("nsp1")
    stamp(k)
    k(f"s_mov_b32 s{sCt}, 8")
    k(f"s_cmp_lg_u32 s{sLY}, 0")
    k(f"s_cbranch_scc1 {lpN}")
    k(f"{lpP}:")
    body(True)
    k(f"s_cmp_gt_u32 s{sCt}, 4")
    k(f"s_cbranch_scc1 {lpP}")
    k(f"s_cmp_lg_u32 s{sWV}, 0")
    k(f"s_cbranch_scc1 {lpN}")
    k(f"v_and_b32 v8, 31, v{vLane}")
    k(f"v_lshlrev_b32 v8, 2, v8")
    for i in range(4): k(f"ds_read_b32 v{244+i}, v8 offset:{0x4000 + 128*i}")
    k("s_waitcnt lgkmcnt(0)")
    for i in range(1, 4): k(f"v_add_f32 v244, v244, v{244+i}")
    k(f"v_cmp_gt_u32 vcc, 32, v{vLane}")
    k.nop(2)
    k("v_cndmask_b32 v244, 0, v244, vcc")
    split3_pack(k, 244, 245, 246, 8, "A")
    k(f"buffer_store_dwordx4 v[8:11], v{vL0}, {S4(SG)}, s{sCorr} offen sc1")
    for _ in range(CFG.get("apad", 0)): k("s_nop 0")
    k(f"{lpN}:")
    body(False)
    k(f"s_cmp_gt_u32 s{sCt}, 3")
    k(f"s_cbranch_scc1 {lpN}")
    k(f"s_cmp_lg_u32 s{sCt}, 0")
    k(f"s_cbranch_scc1 {spec}")
    xl = f"buffer_load_dword v240, v241, {S4(SG)}, s88 offen sc1"
    wl = f"buffer_load_dwordx4 v[244:247], v{vL0}, {S4(SG)}, s89 offen sc1"
    sp5, sp6 = k.label("sp5"), k.label("sp6")
    cold2 = K("main_cold2"); cold.uid = 5000
    cold(f"{spec}:")
    cold(f"s_cmp_eq_u32 s{sCt}, 2")
    cold(f"s_cbranch_scc1 {sp5}")
    cold(f"s_cmp_eq_u32 s{sCt}, 1")
    cold(f"s_cbranch_scc1 {sp6}")
    cold("s_mov_b64 exec, 1")
    cold(f"buffer_store_dword v{vOne}, off, {S4(SG)}, s{sSp2} sc1")
    cold("s_mov_b64 exec, -1")
    if CFG.get("two", 1): touch_set(cold, WO, 128 * KB, 128 * KB, 0)
    if CFG.get("tox", 0):
        cold(f"v_and_b32 v{vT2}, 0xf80, v{vTch}")
        cold(f"v_lshrrev_b32 v241, 5, v{vLane}")
        cold(f"v_lshlrev_b32 v241, 22, v241")
        cold(f"v_add_u32 v{vT2}, v{vT2}, v241")
        assert XMID - OF == 1 << 22
        tile_off(cold, sT2, OF)
    cold(f"s_branch {lpN}")
    cold(f"{sp5}:")
    if CFG.get("two", 1): touch_set(cold, WO, 128 * KB, 128 * KB, 1)
    if CFG.get("tox", 0):
        cold(f"v_and_b32 v{vT2}, 0x80, v{vTch}")
        stat_off(cold, sT2, STMID)
    cold(f"""
    v_and_b32 v241, 31, v{vLane}
    v_lshlrev_b32 v241, 2, v241
    s_lshr_b32 s88, s{sMT}, 1
    s_lshl_b32 s88, s88, 7
    s_add_u32 s88, s88, {XCC}
    s_mov_b32 s89, {WPF}
    """)
    cold(xl); cold(wl)
    cold(f"s_branch {lpN}")
    cold(f"{sp6}:")
    spin_check(cold, xl, [240], 4, cold2)
    cold(f"v_cmp_ne_u32 vcc, s{sXCC}, v240")
    cold(f"s_cmp_lg_u64 vcc, 0")
    cold(f"s_cselect_b32 s{sMODE}, 1, {1 if FORCE_SAFE else 0}")
    spin_check(cold, wl, [244, 245, 246, 247], 4, cold2)
    if CFG.get("tw1", 1):
        cold(f"s_lshl_b32 s{sTch}, s{sNF}, 20")
        cold(f"s_lshl_b32 s32, s{sFX}, 13")
        cold(f"s_add_u32 s{sTch}, s{sTch}, s32")
        cold(f"s_add_u32 s{sTch}, s{sTch}, {WT + T1}")
    cold(f"s_branch {lpN}")
    cold.lines += cold2.lines
    stamp(k)
    k(f"v_mfma_f32_32x32x16_bf16 {vr(Or+16,16)}, {vr(VBUF+8+4,4)}, {vr(Pr+4,4)}, {vr(Or+16,16)}")
    k(f"v_mfma_f32_16x16x32_bf16 {vr(Lr+4,4)}, {ar(aON,4)}, {vr(Pr+4,4)}, {vr(Lr+4,4)}")
    k(f"""
    s_mov_b32 s{sPsz}, 0
    s_mov_b32 s{sSp2}, {OOB}
    s_waitcnt vmcnt(0) lgkmcnt(0)
    s_barrier
    """)
    k.nop(8)
    fin, slow = k.label("fin"), k.label("slow")
    k(f"v_add_f32 v6, v{Lr}, v{Lr+4}")
    for i in range(32): k(f"v_fma_f32 v6, 0, v{Or+i}, v6")
    k(f"""
    v_mov_b32 v5, {f32(2.0**100)}
    v_cmp_nle_f32 vcc, v6, v5
    s_cmp_lg_u64 vcc, 0
    s_cbranch_scc1 {slow}
    {fin}:
    v_rcp_f32 v5, v{Lr}
    v_rcp_f32 v6, v{Lr+4}
    s_lshl_b32 s85, s{sTB}, 16
    s_lshl_b32 s33, s{sNT}, 12
    s_add_u32 s85, s85, s33
    s_add_u32 s85, s85, {OF}
    """)
    for i in range(32): k(f"v_mul_f32 v{Or+i}, v{Or+i}, v{5 + i//16}")
    for i in range(16): k(f"v_cvt_pk_bf16_f32 v{S0+i}, v{Or+2*i}, v{Or+2*i+1}")
    for q in range(4): k(f"buffer_store_dwordx4 {vr(S0+4*q,4)}, v{vL0}, {S4(SR)}, s85 offen offset:{1024*q}{' sc1' if CFG.get('osc1') else ''}")
    c = cold
    c(f"{slow}:")
    vm, va = 8, 10
    for i in range(32): c(f"v_mov_b32 v{Or+i}, 0")
    for i in range(8): c(f"v_mov_b32 v{Lr+i}, 0")
    c(f"v_mov_b32 v{vm}, 0xff800000")
    c(f"v_mov_b32 v{vm+1}, 0xff800000")
    c(f"s_mov_b32 s{sWo}, 0")
    sl = k.label("sloop")
    c(f"{sl}:")
    for f in range(4):
        d = KBUF + 4 * f if f < 2 else VBUF + 4 * (f - 2)
        c(f"buffer_load_dwordx4 {vr(d,4)}, v{vL0}, {S4(SW)}, s{sWo} offen offset:{1024*f} sc1")
    c("s_waitcnt vmcnt(0)")
    for qt in range(2):
        O_, L_ = Or + 16 * qt, Lr + 4 * qt
        c(f"v_mfma_f32_32x32x16_bf16 {vr(S0,16)}, {vr(KBUF,4)}, {vr(Qr+8*qt,4)}, 0")
        c(f"v_mfma_f32_32x32x16_bf16 {vr(S0,16)}, {vr(KBUF+4,4)}, {vr(Qr+8*qt+4,4)}, {vr(S0,16)}")
        c.nop(12)
        tile_max(c, 6, S0, 5)
        c(f"""
        v_max_f32 v6, v6, v{vm+qt}
        v_sub_f32 v{va}, v{vm+qt}, v6
        v_exp_f32 v{va}, v{va}
        v_mov_b32 v{vm+qt}, v6
        """)
        for i in range(16): c(f"v_sub_f32 v{S0+i}, v{S0+i}, v6")
        for i in range(16): c(f"v_exp_f32 v{S0+i}, v{S0+i}")
        for i in range(16): c(f"v_mul_f32 v{O_+i}, v{O_+i}, v{va}")
        for i in range(4): c(f"v_mul_f32 v{L_+i}, v{L_+i}, v{va}")
        for i in range(8): c(f"v_cvt_pk_bf16_f32 v{Pr+i}, v{S0+2*i}, v{S0+2*i+1}")
        c.nop(2)
        for f in range(2):
            c(f"v_mfma_f32_32x32x16_bf16 {vr(O_,16)}, {vr(VBUF+4*f,4)}, {vr(Pr+4*f,4)}, {vr(O_,16)}")
            c(f"v_mfma_f32_16x16x32_bf16 {vr(L_,4)}, {ar(aON,4)}, {vr(Pr+4*f,4)}, {vr(L_,4)}")
        c.nop(12)
    c(f"""
    s_add_u32 s{sWo}, s{sWo}, 4096
    s_cmp_lt_u32 s{sWo}, {256*KB}
    s_cbranch_scc1 {sl}
    """)
    c(f"s_branch {fin}")
    resident_setup(k, WO, 17)
    handoff(k, cold, resident_w_pieces(), CFG["n1"], CFG.get("wo_n2", 20), F_O, sTB, sNT, vPoll, 240)
    acc, wf, pk = 8, 40, 72
    k(f"s_lshl_b32 s{sAo}, s{sTB}, 16")
    k(f"s_add_u32 s{sAo}, s{sAo}, {OF}")
    for t in range(AB): act_ld(k, 4 * t, t)
    k(f"s_waitcnt vmcnt({AB})")
    k("s_barrier")
    resident_loop(k, acc, wf, 0, AB)
    residual(k, acc)
    k("s_barrier")
    x_epilogue(k, acc, pk, 1, sTB, sNT, XMID, STMID, " sc1")
    acc, wf, vst, bc, tmp = 8, 120, 152, 168, 172
    r1 = Ring(7, 4, 4, 16, CFG.get("f1_AB", 8), 7, acc, wf, 0)
    aC1 = 64
    r1.setup_w(k, T1, TS)
    cp = [[("txt", f"s_mul_i32 s34, s{sNF}, {7*KB}"), ("txt", f"s_add_u32 s34, s34, {C1}")]]
    for nb in range(7):
        o = []
        if nb == 4: o.append(("txt", "s_add_u32 s34, s34, 4096"))
        o.append(("vm", ("X", nb), f"buffer_load_dwordx4 {ar(aC1+4*nb,4)}, v{vL0}, {S4(SG)}, s34 offen offset:{1024*(nb%4)}"))
        cp.append(o)
    f2 = F2(8, 72, 232)
    f2.base(k, sAe)
    k(f"s_lshl_b32 s87, s{sWV}, 12")
    ew = f2.early(sAe, 87)
    pcs = r1.wpro[:14] + cp + ew + r1.wpro[14:]
    k(f"s_lshl_b32 s33, s{sTF}, 16")
    k(f"s_add_u32 s33, s33, {XMID}")
    srd_off(k, SA, SR, "s33", 64 * KB)
    k(f"s_mov_b32 s{sAo}, 0")
    k(f"""
    s_mul_i32 s{sT2}, s{sTF}, {224*KB}
    s_mul_i32 s32, s{sNF}, {14*KB}
    s_add_u32 s{sT2}, s{sT2}, s32
    s_add_u32 s{sT2}, s{sT2}, {HF}
    v_min_u32 v172, {27*128}, v{vTch}
    """)
    handoff(k, cold, pcs, CFG.get("f1_n1", 12), CFG.get("f1_n2b", 30), F_XMID, sTB, sNT, vPollX, 240, cross=True)
    kk = K("tmp")
    stats_issue(kk, STMID, vst, 7, sTF)
    si = [("vm", ("S", i), l) if l.startswith("buffer") else ("txt", l) for i, l in enumerate(kk.lines)]
    last_tag = [x[1] for x in si if x[0] == "vm"][-1]
    kk = K("tmp")
    stats_finish(kk, vst, vmean, vrs)
    kk(f"v_mul_f32 v{vrs}, {f32(-LOG2E)}, v{vrs}")
    kk(f"v_mov_b32 v{vrs+1}, v{vrs}")
    split3_pack(kk, vmean, vst, vst + 1, bc, "B")
    pro1 = {}
    for i, x in enumerate(si): pro1.setdefault(2 + i // 2, []).append(x)
    pro1.setdefault(60, []).append(("wait", last_tag))
    for i, l in enumerate(kk.lines): pro1.setdefault(60 + i // 2, []).append(("txt", l))
    extra = {}
    if CFG.get("ht1", 1):
        nt_ = CFG.get("htn", 2)
        for i in range(nt_):
            extra[CFG.get("ht1q", 10) + i * (112 // nt_)] = [
                ("txt", f"s_cmp_le_u32 s{sCt}, {4 // nt_}"), ("txt", f"s_cselect_b32 s33, s{sT2}, {OOB}"), ("txt", f"s_cselect_b32 s32, {28*128}, 0"),
                ("vm", ("S", 99 + i), f"buffer_load_dword v{vDum}, v172, {S4(SR)}, s33 offen sc1"), ("txt", f"s_add_u32 s{sT2}, s{sT2}, s32")]
    r1.main(k, pro1, extra)
    k(f"s_mov_b32 s{sT2}, {OOB}")
    for nb in range(7):
        a = acc + 16 * nb
        k(f"v_mfma_f32_32x32x16_bf16 {vr(a,16)}, {ar(aC1+4*nb,4)}, {vr(bc,4)}, {vr(a,16)}")
    for pc in r1.wtail: emit_items(k, pc)
    k("s_waitcnt lgkmcnt(0)")
    k("s_barrier")
    aRf = lambda i: ar(112 + 4 * i if i < 4 else aX + 4 * (i - 4), 4)
    k(f"""
    s_mov_b32 s{sLw}, s87
    s_add_u32 s{sWo}, s{sAe}, {5*16*KB}
    s_sub_u32 s32, s{sNT}, s{sNF}
    s_lshl_b32 s32, s32, 20
    s_add_u32 s{sJl}, s32, {16*KB}
    s_lshl_b32 s90, s{sTF}, 16
    s_lshl_b32 s33, s{sJ}, 13
    s_add_u32 s90, s90, s33
    s_add_u32 s34, s90, {XMID}
    s_cmp_eq_u32 s{sOWN}, 0
    s_cselect_b32 s34, {OOB}, s34
    s_add_u32 s90, s90, {EX}
    s_add_u32 s91, s90, 4096
    v_add_u32 v232, s87, v{vL0}
    v_add_u32 v233, s87, v{vL1}
    v_add_u32 v234, s87, v{vL2}
    """)
    for pc in f2.stage(5) + f2.stage(6): emit_items(k, pc)
    k(f"""
    s_mul_i32 s35, s{sTF}, {224*KB}
    s_and_b32 s32, s2, 1
    s_mul_i32 s32, s32, {112*KB}
    s_add_u32 s33, s35, s32
    s_add_u32 s33, s33, {HF}
    """)
    srd_off(k, SA, SR, "s33", 112 * KB)
    k(f"""
    s_mov_b32 s{sAn}, s{sJ}
    s_mul_i32 s33, s{sNF}, {14*KB}
    s_add_u32 s35, s35, s33
    s_add_u32 s35, s35, {HF}
    """)
    e = 120
    own = 176
    HS = " sc1" if CFG.get("hsc1", 0) else ""
    for nb in range(7):
        a = acc + 16 * nb
        p = own + 8 * nb
        if nb < 4:
            if nb == 2: k("s_add_u32 s34, s34, 4096")
            for q in (2 * nb, 2 * nb + 1):
                k(f"buffer_load_dwordx4 {aRf(q)}, v{vL0}, {S4(SR)}, s34 offen offset:{1024*(q%4)} sc1")
        for i in range(8): k(f"v_pk_mul_f32 {vr(a+2*i,2)}, {vr(a+2*i,2)}, {vr(vrs,2)}")
        for i in range(16): k(f"v_exp_f32 v{e+i}, v{a+i}")
        for i in range(8): k(f"v_pk_fma_f32 {vr(e+2*i,2)}, {vr(e+2*i,2)}, s[{sL2E}:{sL2E+1}], s[{sL2E}:{sL2E+1}]")
        for i in range(16): k(f"v_rcp_f32 v{e+i}, v{e+i}")
        for i in range(8): k(f"v_pk_mul_f32 {vr(a+2*i,2)}, {vr(a+2*i,2)}, {vr(e+2*i,2)}")
        for i in range(8): k(f"v_cvt_pk_bf16_f32 v{p+i}, v{a+2*i}, v{a+2*i+1}")
        for half in range(2):
            k(f"buffer_store_dwordx4 {vr(p+4*half,4)}, v{vL0}, {S4(SR)}, s35 offen offset:{((2*nb+half)%4)*1024}{HS}")
        if nb % 2 == 1: k("s_add_u32 s35, s35, 4096")
    acc, pk = 8, 104
    f2.main(k, cold, own, CFG.get("t1", 5), CFG.get("t2", 7), CFG.get("t3", 10))
    recv, ywait, final = k.label("recv"), k.label("ywait"), k.label("final")
    k(f"s_cmp_lg_u32 s{sOWN}, 0")
    k(f"s_cbranch_scc1 {recv}")
    k.nop(10)
    for i in range(32):
        k(f"v_cvt_pk_bf16_f32 v{pk+i}, v{acc+2*i}, v{acc+2*i+1}")
        if i % 4 == 3:
            q = i // 4
            k(f"buffer_store_dwordx4 {vr(pk+4*q,4)}, v{vL0}, {S4(SR)}, {'s90' if q < 4 else 's91'} offen offset:{1024*(q%4)} sc1")
    k(f"s_cmp_lg_u32 s{sLY}, 0")
    k(f"s_cbranch_scc1 {'L_prof_end' if PROF else end}")
    stamp(k); stamp(k)
    k(f"s_branch {ywait}")
    k(f"{recv}:")
    def inbox(kk):
        for q in range(8):
            kk(f"buffer_load_dwordx4 {vr(pk+4*q,4)}, v{vL0}, {S4(SR)}, {'s90' if q < 4 else 's91'} offen offset:{1024*(q%4)} sc1")
    def inbox_test(kk):
        kk(f"v_max3_u32 v5, v{pk}, v{pk+1}, v{pk+2}")
        for i in range(3, 31, 2): kk(f"v_max3_u32 v5, v5, v{pk+i}, v{pk+i+1}")
        kk(f"v_max_u32 v5, v5, v{pk+31}")
        kk("v_cmp_eq_u32 vcc, -1, v5")
        kk("s_cmp_lg_u64 vcc, 0")
    residual(k, acc, 4, aRf)
    inbox(k)
    ok, sp, lp = k.label("ok"), k.label("spin"), k.label("sl")
    k("s_waitcnt vmcnt(0)")
    inbox_test(k)
    k(f"s_cbranch_scc1 {sp}")
    k(f"{ok}:")
    cold(f"{sp}:")
    cold(f"s_mov_b32 s32, {SPIN}")
    cold(f"{lp}:")
    inbox(cold)
    cold("s_waitcnt vmcnt(0)")
    inbox_test(cold)
    cold(f"s_cbranch_scc0 {ok}")
    cold("s_sub_u32 s32, s32, 1")
    cold("s_cmp_lg_u32 s32, 0")
    cold(f"s_cbranch_scc1 {lp}")
    cold(f"s_branch {ok}")
    stamp(k)
    residual(k, acc, 4, lambda i: vr(pk + 4 * i, 4))
    k(f"s_cmp_lg_u32 s{sLY}, 0")
    k(f"s_cbranch_scc1 {final}")
    x_epilogue(k, acc, 136, 2, sTF, sJ, RS + XIN, RS + STIN, " sc1" if CFG.get("osc1") else "")
    publish(k, cold, 0, RS + F_XIN, sTF, sJ, two=True)
    stamp(k)
    k(f"{ywait}:")
    await_flags(k, cold, [], [], RS + F_XIN, vPollA, 240)
    stamp(k)
    k(f"""
    s_add_u32 s{SR}, s{SR}, {RS}
    s_addc_u32 s{SR+1}, s{SR+1}, 0
    s_mov_b32 s{sLY}, 1
    s_branch {layer}
    {final}:
    """)
    pk = 136
    srd(k, SA, "s6", "s7", 2048 * 2048)
    k(f"""
    v_and_b32 v5, 31, v{vLane}
    v_lshrrev_b32 v6, 5, v{vLane}
    v_lshlrev_b32 v5, 11, v5
    v_lshl_add_u32 v5, v6, 4, v5
    s_lshl_b32 s35, s{sTF}, 16
    s_lshl_b32 s33, s{sJ}, 8
    s_add_u32 s35, s35, s33
    """)
    for i in range(32): k(f"v_cvt_pk_bf16_f32 v{pk+i}, v{acc+2*i}, v{acc+2*i+1}")
    k.nop(2)
    for q in range(8):
        b = pk + 4 * q
        k(f"v_permlane32_swap_b32 v{b}, v{b+2}")
        k(f"v_permlane32_swap_b32 v{b+1}, v{b+3}")
    for q in range(8):
        k(f"buffer_store_dwordx4 {vr(pk+4*q,4)}, v5, {S4(SA)}, s35 offen offset:{32*q}")
    if PROF: k("L_prof_end:")
    if PROF:
        k("s_waitcnt vmcnt(0)")
        stamp(k)
        k("s_memrealtime s[70:71]")
        k("s_waitcnt lgkmcnt(0)")
        k("v_writelane_b32 v255, s70, 63")
        k(f"v_writelane_b32 v255, s{sMODE}, 62")
        srd(k, SA, "s4", "s5", WS_SIZE)
        k(f"""
        s_lshl_b32 s33, s2, 2
        s_add_u32 s33, s33, s{sWV}
        s_lshl_b32 s33, s33, 8
        s_add_u32 s33, s33, {PROFB}
        v_lshlrev_b32 v5, 2, v{vLane}
        buffer_store_dword v255, v5, {S4(SA)}, s33 offen
        """)
    k(f"{end}:")
    k("s_endpgm")
    k.lines += cold.lines
    return k, dict(grid=256, block=256, lds=160 * KB, vgpr=512, accum=256)

def build():
    km = gen_main()
    code_kb = 64
    kern = {}
    for k, m in (gen_prep(code_kb), km): kern[k.name] = (k, m)
    order = ["prep_kernel", "main_kernel"]
    out = ["; interleaved MQA attention + SiLU FFN, 2 layers; emitted by gen/gen5.py (own generator)"]
    for n in order:
        m = kern[n][1]
        out.append(f"; @launch kernel={n} grid=({m['grid']},1,1) block=({m['block']},1,1) lds={m['lds']}")
    out.append('.amdgcn_target "amdgcn-amd-amdhsa--gfx950"')
    out.append(".text")
    errs = []
    for n, (k, m) in kern.items():
        errs += check_hazards(k.lines, n)
        out += [f".globl {n}", ".p2align 8", f".type {n},@function", f"{n}:", k.text()]
    out.append("Lcode_end:")
    out.append(f".fill (({code_kb * 1024} - (Lcode_end - main_kernel)) / 4), 4, 0xbf800000")
    out.append('.section .rodata,"a"')
    for n, (k, m) in kern.items():
        out.append(kernel_desc(n, m["vgpr"], m["accum"]))
    return "\n".join(out) + "\n", errs

if __name__ == "__main__":
    txt, errs = build()
    for e in errs: print("HAZARD", e)
    dst = sys.argv[1] if len(sys.argv) > 1 else "k5.s"
    open(dst, "w").write(txt)
    print("wrote", dst, len(txt), "bytes;", len(errs), "hazards")
```
